```python
import torch

def _softmax(x, axis=-1):
    return torch.softmax(x, dim=axis)
def _gelu(x):
    return torch.nn.functional.gelu(x, approximate="tanh")
def _silu(x):
    return torch.nn.functional.silu(x)
def _sigmoid(x):
    return torch.sigmoid(x)
def _layernorm(x, axis=-1, eps=1e-5):
    m = x.mean(dim=axis, keepdim=True)
    v = x.var(dim=axis, keepdim=True, unbiased=False)
    return (x - m) / torch.sqrt(v + eps)
def _scatter_add(tgt, idx, src, axis=0):
    return tgt.clone().index_add_(axis, idx, src)
def _segment_sum(src, seg, n):
    out = torch.zeros((n,) + src.shape[1:], dtype=src.dtype)
    return out.index_add_(0, seg, src)
def _pad(x, pw):
    flat = tuple(v for pair in reversed(pw) for v in pair)
    return torch.nn.functional.pad(x, flat)

kernel_name = 'parallel_sum__gqa_block_cached__dense_activation_relu__decode'

def setup_inputs():

    _w = (lambda a: (lambda t: t.to(torch.bfloat16) if t.is_floating_point() else t)(torch.as_tensor(a)))
    def _A_setup():
        B, Sq, D = 1, 1, 448
        Hq, Hkv, Sk, Dh = 16, 8, 32768, 256
        assert Hq % Hkv == 0, (Hq, Hkv)
        return {
            "x": _w((lambda *s: torch.randn(*s, dtype=torch.bfloat16) * 0.05)(B, Sq, D)),
            "k_cache": _w((lambda *s: torch.randn(*s, dtype=torch.bfloat16) * 3.2)(B, Hkv, Sk, Dh)),
            "v_cache": _w((lambda *s: torch.randn(*s, dtype=torch.bfloat16) * 1.6)(B, Hkv, Sk, Dh)),
            "wq": _w((lambda *s: torch.randn(*s, dtype=torch.bfloat16) * 3.2)(D, Hq * Dh) * (D ** -0.5)),
            "wo": _w((lambda *s: torch.randn(*s, dtype=torch.bfloat16) * 1.6)(Hq * Dh, D) * ((Hq * Dh) ** -0.5)),
        }
    _A_in = _A_setup()

    def _B_setup():
        B, S, D, Dff = 1, 1, 448, 1792
        return {
            "x": _w((lambda *s: torch.randn(*s, dtype=torch.bfloat16) * 0.05)(B, S, D)),
            "w1": _w((lambda *s: torch.randn(*s, dtype=torch.bfloat16) * 0.05)(D, Dff)),
            "w2": _w((lambda *s: torch.randn(*s, dtype=torch.bfloat16) * 0.05)(Dff, D)),
        }
    _B_in = _B_setup()

    return {
        "A_x": _A_in["x"],
        "A_k_cache": _A_in["k_cache"],
        "A_v_cache": _A_in["v_cache"],
        "A_wq": _A_in["wq"],
        "A_wo": _A_in["wo"],
        "B_x": _B_in["x"],
        "B_w1": _B_in["w1"],
        "B_w2": _B_in["w2"],
    }

def reference(A_x, A_k_cache, A_v_cache, A_wq, A_wo, B_x, B_w1, B_w2):
    def _A_ref(x, k_cache, v_cache, wq, wo):
        B, Sq, D = x.shape
        Hq, Dh = 16, 256
        Hkv = k_cache.shape[1]
        rep = Hq // Hkv
        q = (lambda x, *d: x.permute(*d))((x @ wq).reshape(B, Sq, Hq, Dh), 0, 2, 1, 3)
        k = (lambda x, n, axis: torch.repeat_interleave(x, n, dim=axis))(k_cache, rep, axis=1)
        v = (lambda x, n, axis: torch.repeat_interleave(x, n, dim=axis))(v_cache, rep, axis=1)
        scores = torch.einsum("bhqd,bhkd->bhqk", q, k) * (Dh ** -0.5)
        p = _softmax(scores, axis=-1)
        o = torch.einsum("bhqk,bhkd->bhqd", p, v)
        return (lambda x, *d: x.permute(*d))(o, 0, 2, 1, 3).reshape(B, Sq, Hq * Dh) @ wo

    def _B_ref(x, w1, w2):
        h = torch.einsum("bsd,df->bsf", x, w1)
        zero = torch.zeros_like(h)
        h = torch.maximum(h, zero)
        return torch.einsum("bsf,fd->bsd", h, w2)

    x = A_x
    xn = _layernorm(x, axis=-1)
    return x + _A_ref(xn, A_k_cache, A_v_cache, A_wq, A_wo) + _B_ref(xn, B_w1, B_w2)
```

```python
import sys, math
from asmlib import *

NAME = "parallel_sum__gqa_block_cached__dense_activation_relu__decode_kernel"
HDR = open("parallel_sum__gqa_block_cached__dense_activation_relu__decode.s.ref").read().split("; Override launch")[0]

WS_QREC = 0x20000
WS_FREC = 0x40000
WS_ML   = 0x60000
WS_H1   = 0x100000
WS_H2   = 0x200000
WS_TS   = 0x400000
L_Q, L_H, L_M, L_L, L_O = 0, 1024, 1152, 1216, 2048
L_WO = L_O + 16384
L_W2 = L_WO + 16384
LDS_BYTES = L_W2 + 16384
DPPF = "row_mask:0xf bank_mask:0xf"
CEXP = 0x3db8aa3b

def gen(ts=False, pol="nt", wpol="nt", spin=1<<22, pace=5, presleep=0, notail=False, tsleep=0, noq=False,
        noweights=False, kpace=0, wpos=4):
    a = Asm()
    a(HDR.rstrip())
    a(f"; @launch grid=(256,1,1) block=(512,1,1) lds={LDS_BYTES}")
    a(f""".amdgcn_target "amdgcn-amd-amdhsa--gfx950"
.text
.globl {NAME}
.p2align 8
.type {NAME},@function
{NAME}:""")
    def stamp(i):
        if ts:
            a(f"s_memrealtime s[100:101]\ns_waitcnt lgkmcnt(0)\nv_writelane_b32 v7, s100, {i}")
    RING = 128
    SP, QOP, D0, D1, XT, ACC, PT = 8, 24, 40, 56, 72, 24, 88
    a("s_cmp_ge_u32 s2, 256\ns_cbranch_scc1 L_end")
    a("s_load_dwordx16 s[4:19], s[0:1], 0")
    a("s_load_dwordx2 s[20:21], s[0:1], 64")
    a("s_load_dwordx2 s[22:23], s[0:1], 80")
    a("v_lshrrev_b32 v1, 6, v0")
    a("v_and_b32 v0, 63, v0")
    if ts: a("v_mov_b32 v7, 0")
    a("v_readfirstlane_b32 s3, v1")
    stamp(0)
    a("s_and_b32 s35, s2, 7")
    a("s_lshr_b32 s2, s2, 3")
    a("v_bfe_u32 v2, v0, 4, 1\nv_lshlrev_b32 v2, 11, v2")
    a("v_bfe_u32 v3, v0, 3, 1\nv_lshl_add_u32 v2, v3, 10, v2")
    a("v_lshrrev_b32 v3, 5, v0\nv_lshl_add_u32 v2, v3, 9, v2")
    a("v_and_b32 v6, 7, v0\nv_lshl_add_u32 v2, v6, 4, v2")
    a("v_lshrrev_b32 v3, 4, v0\nv_lshlrev_b32 v3, 9, v3\nv_and_b32 v4, 15, v0\nv_lshl_add_u32 v3, v4, 4, v3")
    a("s_lshl_b32 s33, s2, 3\ns_add_u32 s33, s33, s3\ns_lshl_b32 s33, s33, 13")
    a("s_lshl_b32 s32, s35, 24")
    a("s_mul_i32 s44, s35, 14\ns_add_u32 s44, s44, s2")
    a("s_waitcnt lgkmcnt(0)")
    a("s_load_dword s34, s[22:23], 0")
    a("s_add_u32 s24, s6, s32\ns_addc_u32 s25, s7, 0\ns_mov_b32 s26, 0x1000000\ns_mov_b32 s27, 0x20000")
    a("s_add_u32 s28, s8, s32\ns_addc_u32 s29, s9, 0\ns_mov_b32 s30, 0x1000000\ns_mov_b32 s31, 0x20000")
    a("s_mov_b32 s6, 0x05040100\ns_mov_b32 s7, 0x07060302")
    a("s_lshl_b32 s8, s35, 5\ns_add_u32 s8, s8, s2")

    cur = [None]
    def ring_load(n):
        if n < 64:
            off = (n >> 3) * (2 << 20) + ((n >> 2) & 1) * 4096 + (n & 3) * 128
            srd, vo = "s[24:27]", "v2"
        else:
            m = n - 64
            T, hf, e = m >> 4, (m >> 3) & 1, m & 7
            G, j = e >> 1, e & 1
            off = (2*T + (G >> 1)) * (2 << 20) + (G & 1) * 4096 + j * 2048 + hf * 256
            srd, vo = "s[28:31]", "v3"
        hi, lo = off & ~4095, off & 4095
        if cur[0] != hi:
            a(f"s_add_u32 s32, s33, {hi}")
            cur[0] = hi
        r = RING + 4 * (n % 32)
        a(f"buffer_load_dwordx4 v[{r}:{r+3}], {vo}, {srd}, s32 offen offset:{lo} {pol}")
    def rowreduce(v, t, op="v_add_f32"):
        a(f"v_mov_b32 v{t}, v{v}\ns_nop 1\nv_permlane16_swap_b32 v{v}, v{t}\n{op} v{v}, v{v}, v{t}")
        a(f"v_mov_b32 v{t}, v{v}\ns_nop 1\nv_permlane32_swap_b32 v{v}, v{t}\n{op} v{v}, v{v}, v{t}")
    def allreduce_par(v, t, op="v_add_f32"):
        a("s_nop 1")
        a(f"{op}_dpp v{v}, v{v}, v{v} quad_perm:[2,3,0,1] {DPPF}\ns_nop 1")
        a(f"{op}_dpp v{v}, v{v}, v{v} row_ror:4 {DPPF}\ns_nop 1")
        a(f"{op}_dpp v{v}, v{v}, v{v} row_ror:8 {DPPF}")
        rowreduce(v, t, op)

    if noq: a("s_branch L_streamer")
    a("s_cmp_ge_u32 s3, 2\ns_cbranch_scc1 L_streamer")
    a("s_cmp_eq_u32 s3, 0\ns_cbranch_scc1 L_gemv")
    a("s_cmp_ge_u32 s2, 14\ns_cbranch_scc1 L_streamer")
    a("L_gemv:")
    a("s_setprio 3")
    a("s_lshl_b32 s9, s35, 3\ns_and_b32 s45, s2, 7\ns_add_u32 s9, s9, s45")
    a("s_lshr_b32 s45, s2, 3\ns_lshr_b32 s46, s44, 2\ns_and_b32 s47, s44, 3")
    a(f"s_lshl_b32 s48, s8, 9\ns_add_u32 s48, s48, {WS_QREC}\ns_lshl_b32 s49, s44, 9\ns_add_u32 s49, s49, {WS_FREC}")
    a("s_mov_b32 s38, 1605632\ns_mov_b32 s41, 3584")
    a("s_cmp_eq_u32 s3, 0")
    a("s_cselect_b32 s36, s10, s16\ns_cselect_b32 s37, s11, s17\ns_cselect_b32 s38, 3670016, s38\ns_mov_b32 s39, 0x20000")
    a("s_cselect_b32 s41, 8192, s41")
    a("s_cselect_b32 s42, s9, s46")
    a("s_cselect_b32 s45, s45, s47")
    a("s_cselect_b32 s48, s48, s49")
    a("v_lshrrev_b32 v4, 1, v0\nv_mul_u32_u24 v5, 28, v4")
    a("global_load_dwordx4 v[8:11], v5, s[4:5]\nglobal_load_dwordx3 v[12:14], v5, s[4:5] offset:16")
    a("v_lshrrev_b32 v4, 3, v0\ns_mul_i32 s46, s45, 224\nv_mul_u32_u24 v5, 28, v4\nv_add_u32 v5, s46, v5")
    a("global_load_dwordx4 v[56:59], v5, s[4:5]\nglobal_load_dwordx3 v[60:62], v5, s[4:5] offset:16")
    a("s_mul_i32 s43, s41, 14\nv_mul_lo_u32 v5, v4, s43\nv_lshl_add_u32 v5, v6, 4, v5")
    a("s_lshl_b32 s42, s42, 7\ns_mul_i32 s46, s45, 112\ns_mul_i32 s46, s46, s41\ns_add_u32 s42, s42, s46")
    WB = 128
    for i in range(14):
        a(f"buffer_load_dwordx4 v[{WB+4*i}:{WB+4*i+3}], v5, s[36:39], s42 offen {wpol}")
        if i < 13: a("s_add_u32 s42, s42, s41")
    a("s_waitcnt vmcnt(16)")
    XF = 16
    for u in range(7):
        a(f"v_lshlrev_b32 v{XF+2*u}, 16, v{8+u}\nv_and_b32 v{XF+2*u+1}, 0xffff0000, v{8+u}")
    a(f"v_add_f32 v30, v{XF}, v{XF+1}")
    for i in range(2, 14): a(f"v_add_f32 v30, v30, v{XF+i}")
    allreduce_par(30, 31)
    a("v_mul_f32 v30, 0x3b124925, v30")
    a(f"v_sub_f32 v32, v{XF}, v30\nv_mul_f32 v33, v32, v32")
    for i in range(1, 14): a(f"v_sub_f32 v32, v{XF+i}, v30\nv_fmac_f32 v33, v32, v32")
    allreduce_par(33, 31)
    a("v_mul_f32 v33, 0x3b124925, v33")
    a("v_cvt_pk_bf16_f32 v30, v30, v33")
    a("v_and_b32 v33, 0xffff0000, v30\nv_lshlrev_b32 v30, 16, v30")
    a("v_add_f32 v33, 0x3727c5ac, v33")
    a("v_cvt_pk_bf16_f32 v33, v33, v33\nv_and_b32 v33, 0xffff0000, v33")
    a("v_sqrt_f32 v33, v33\ns_nop 0")
    a("v_cvt_pk_bf16_f32 v33, v33, v33\nv_and_b32 v33, 0xffff0000, v33")
    a("v_rcp_f32 v33, v33")
    a("s_waitcnt vmcnt(14)")
    for u in range(7):
        a(f"v_lshlrev_b32 v16, 16, v{56+u}\nv_and_b32 v17, 0xffff0000, v{56+u}")
        a(f"v_sub_f32 v16, v16, v30\nv_sub_f32 v17, v17, v30")
        a(f"v_cvt_pk_bf16_f32 v17, v16, v17")
        a(f"v_lshlrev_b32 v16, 16, v17\nv_and_b32 v17, 0xffff0000, v17")
        a(f"v_mul_f32 v16, v16, v33\nv_mul_f32 v17, v17, v33")
        a(f"v_cvt_pk_bf16_f32 v{8+u}, v16, v17")
    GA = 40
    for u in range(7):
        a(f"s_waitcnt vmcnt({12-2*u})")
        for w in range(4):
            r0, r1 = WB + 8*u + w, WB + 8*u + 4 + w
            a(f"v_perm_b32 v{48+2*w}, v{r1}, v{r0}, s6\nv_perm_b32 v{49+2*w}, v{r1}, v{r0}, s7")
        for c in range(8):
            a(f"v_dot2_f32_bf16 v{GA+c}, v{48+c}, v{8+u}, {'0' if u == 0 else 'v%d' % (GA+c)}")
    a("s_waitcnt lgkmcnt(0)\ns_add_u32 s34, s34, 1\ns_nop 0")
    for c in range(4): a(f"v_permlane32_swap_b32 v{GA+c}, v{GA+c+4}")
    for c in range(4): a(f"v_add_f32 v{GA+c}, v{GA+c}, v{GA+c+4}")
    a("v_lshrrev_b32 v4, 4, v0")
    for c in range(2): a(f"v_permlane16_swap_b32 v{GA+c}, v{GA+c+2}")
    for c in range(2): a(f"v_add_f32 v{GA+c}, v{GA+c}, v{GA+c+2}")
    a("v_lshl_add_u32 v4, v6, 2, v4")
    a(f"v_add_f32_dpp v{GA}, v{GA}, v{GA} row_ror:8 {DPPF}")
    a(f"v_add_f32_dpp v{GA+2}, v{GA+1}, v{GA+1} row_ror:8 {DPPF}")
    a(f"v_mov_b32 v{GA+1}, s34\nv_mov_b32 v{GA+3}, s34")
    a("v_lshl_add_u32 v4, v4, 4, s48")
    a("s_mov_b32 exec_lo, 0x00ff00ff\ns_mov_b32 exec_hi, 0x00ff00ff")
    a(f"global_store_dwordx4 v4, v[{GA}:{GA+3}], s[22:23] sc1")
    a("s_mov_b64 exec, -1")
    stamp(1)
    a("s_cmp_eq_u32 s3, 0\ns_cbranch_scc0 L_streamer1")
    a(f"s_lshl_b32 s9, s35, 14\ns_add_u32 s9, s9, {WS_QREC}")
    a("v_lshl_add_u32 v8, v0, 4, s9\nv_add_u32 v9, 4096, v8\nv_add_u32 v10, 8192, v8\nv_add_u32 v11, 12288, v8")
    a("s_sub_u32 s45, s44, 18\ns_and_b32 s46, s45, 3\ns_andn2_b32 s45, s45, 3")
    a(f"s_lshl_b32 s45, s45, 9\ns_lshl_b32 s46, s46, 7\ns_add_u32 s45, s45, s46\ns_add_u32 s45, s45, {WS_FREC}")
    a("s_cmp_ge_u32 s2, 18\ns_cselect_b32 s45, s45, s9")
    a("v_lshrrev_b32 v12, 4, v0\nv_lshlrev_b32 v12, 9, v12\nv_lshl_add_u32 v12, v6, 4, v12\nv_add_u32 v12, s45, v12")
    a(f"s_mov_b32 s9, {spin}")
    if presleep: a(f"s_sleep {presleep}")
    a("L_gpoll:")
    GB = 128
    for rq in range(4):
        for j in range(4):
            r = GB + 16*j + 4*rq
            a(f"global_load_dwordx4 v[{r}:{r+3}], v{8+rq}, s[22:23] offset:{1024*j} sc1")
    a(f"global_load_dwordx4 v[{GB+64}:{GB+67}], v12, s[22:23] sc1")
    a("s_sub_u32 s9, s9, 1\ns_cbranch_scc1 L_gok")
    a("v_mov_b32 v16, 0")
    for i in range(17):
        rq, j = i >> 2, i & 3
        r = GB + 16*j + 4*rq if i < 16 else GB + 64
        a(f"s_waitcnt vmcnt({16-i})")
        a(f"v_xor_b32 v17, s34, v{r+1}\nv_xor_b32 v18, s34, v{r+3}\nv_or3_b32 v16, v16, v17, v18")
    a("v_cmp_ne_u32 vcc, 0, v16\ns_cbranch_vccnz L_gpoll")
    a("L_gok:")
    a("s_waitcnt vmcnt(0)")
    a("v_lshlrev_b32 v4, 2, v0")
    for j in range(4):
        r = GB + 16*j
        a(f"v_add_f32 v{r}, v{r}, v{r+4}\nv_add_f32 v{r+2}, v{r+2}, v{r+6}\nv_add_f32 v{r+8}, v{r+8}, v{r+12}\nv_add_f32 v{r+10}, v{r+10}, v{r+14}")
        a(f"v_add_f32 v{r}, v{r}, v{r+8}\nv_add_f32 v{r+2}, v{r+2}, v{r+10}")
        a(f"v_cvt_pk_bf16_f32 v{r}, v{r}, v{r+2}")
        a(f"ds_write_b32 v4, v{r} offset:{L_Q + 256*j}")
    rowreduce(GB+64, 16)
    rowreduce(GB+66, 16)
    a(f"v_max_f32 v{GB+64}, 0, v{GB+64}\nv_max_f32 v{GB+66}, 0, v{GB+66}\nv_cvt_pk_bf16_f32 v16, v{GB+64}, v{GB+66}")
    a("s_mov_b64 exec, 0xff")
    a(f"ds_write_b32 v4, v16 offset:{L_H}")
    a("s_mov_b64 exec, -1")
    a("s_waitcnt lgkmcnt(0)")
    stamp(2)
    a("s_barrier")
    a("s_setprio 0")
    cur[0] = None
    for n in range(32): ring_load(n)
    a("s_branch L_main")
    a("L_streamer:")
    a("s_waitcnt lgkmcnt(0)\ns_add_u32 s34, s34, 1") if False else None
    cur[0] = None
    for n in range(pace): ring_load(n)
    a("s_waitcnt lgkmcnt(0)\ns_add_u32 s34, s34, 1")
    a("s_branch L_streamer2")
    a("L_streamer1:")
    a("s_setprio 0")
    cur[0] = None
    for n in range(pace): ring_load(n)
    a("L_streamer2:")
    cur[0] = None
    for n in range(pace, 32):
        a(f"s_waitcnt vmcnt({pace-1})")
        ring_load(n)
    stamp(2)
    a("s_barrier")
    a("L_main:")
    for i in range(16): a(f"v_mov_b32 v{QOP+i}, 0")
    a("v_bfe_u32 v4, v0, 3, 1\nv_lshlrev_b32 v4, 9, v4\nv_lshl_add_u32 v4, v6, 4, v4")
    a("s_mov_b32 exec_lo, 0x0000ffff\ns_mov_b32 exec_hi, 0xffff0000")
    for t in range(4): a(f"ds_read_b128 v[{QOP+4*t}:{QOP+4*t+3}], v4 offset:{L_Q+128*t}")
    a("s_mov_b64 exec, -1")
    a("v_mov_b32 v4, 0xff800000")
    a("s_waitcnt lgkmcnt(0)")
    stamp(3)
    def extract(g):
        D = (D0, D1)[g & 1]
        for q in range(4):
            a(f"v_add_f32_dpp v{XT+q}, v{D+4*q+1}, v{D+4*q} quad_perm:[1,1,1,1] {DPPF}")
        for q in range(4):
            a(f"v_add_f32_dpp v{XT+q}, v{D+4*q+2}, v{XT+q} quad_perm:[2,2,2,2] {DPPF}")
        for q in range(4):
            a(f"v_add_f32_dpp v{XT+q}, v{D+4*q+3}, v{XT+q} quad_perm:[3,3,3,3] {DPPF}")
        a(f"s_nop 1\nv_permlane32_swap_b32 v{XT}, v{XT+1}\nv_permlane32_swap_b32 v{XT+2}, v{XT+3}\ns_nop 0")
        a(f"v_add_f32_dpp v{XT}, v{XT+1}, v{XT} row_shl:4 {DPPF} bound_ctrl:0")
        a(f"v_add_f32_dpp v{XT+2}, v{XT+3}, v{XT+2} row_shl:4 {DPPF} bound_ctrl:0")
        a(f"v_max3_f32 v4, v{XT}, v{XT+2}, v4")
        a(f"v_cvt_pk_bf16_f32 v{SP+g}, v{XT}, v{XT+2}")
    def paced(n):
        if kpace: a(f"s_waitcnt vmcnt({kpace-1})")
        ring_load(n)
    cur[0] = None
    for g in range(16):
        D = (D0, D1)[g & 1]
        a("s_waitcnt vmcnt(28)")
        for t in range(4):
            r = RING + 4 * ((4*g + t) % 32)
            a(f"v_mfma_f32_32x32x16_bf16 v[{D}:{D+15}], v[{r}:{r+3}], v[{QOP+4*t}:{QOP+4*t+3}], {'0' if t == 0 else 'v[%d:%d]' % (D, D+15)}")
        for t in range(4): paced(4*g + t + 32)
        if g > 0: extract(g - 1)
    a("s_nop 7")
    extract(15)
    stamp(4)
    rowreduce(4, 5, "v_max_f32")
    a("v_cvt_pk_bf16_f32 v4, v4, v4\nv_and_b32 v4, 0xffff0000, v4")
    a(f"s_mov_b32 s9, {CEXP}")
    a("v_mul_f32 v4, s9, v4")
    a("v_mov_b32 v5, 0")
    for i in range(16):
        t0, t1 = PT + 2*(i & 3), PT + 2*(i & 3) + 1
        a(f"v_lshlrev_b32 v{t0}, 16, v{SP+i}\nv_and_b32 v{t1}, 0xffff0000, v{SP+i}")
        a(f"v_fma_f32 v{t0}, v{t0}, s9, -v4\nv_fma_f32 v{t1}, v{t1}, s9, -v4")
        a(f"v_exp_f32 v{t0}, v{t0}\nv_exp_f32 v{t1}, v{t1}")
        a(f"v_add_f32 v5, v5, v{t0}\nv_add_f32 v5, v5, v{t1}")
        a(f"v_cvt_pk_bf16_f32 v{SP+i}, v{t0}, v{t1}")
    rowreduce(5, 6)
    a("s_lshl_b32 s9, s3, 2\nv_lshl_add_u32 v6, v0, 2, s9")
    a("s_mov_b64 exec, 0x101")
    a(f"ds_write_b32 v6, v4 offset:{L_M}\nds_write_b32 v6, v5 offset:{L_L}")
    a("s_mov_b64 exec, -1")
    a("s_sub_u32 s9, s44, 18\ns_mul_i32 s9, s9, 14336")
    a("s_cmp_ge_u32 s2, 18\ns_cselect_b32 s9, s9, 0\ns_cselect_b32 s42, 14336, 0")
    a("s_add_u32 s40, s18, s9\ns_addc_u32 s41, s19, 0\ns_mov_b32 s43, 0x20000")
    a("s_mul_i32 s9, s8, 14336")
    a("s_add_u32 s36, s12, s9\ns_addc_u32 s37, s13, 0\ns_mov_b32 s38, 14336\ns_mov_b32 s39, 0x20000")
    a("s_lshl_b32 s9, s3, 6\nv_add_u32 v1, s9, v0")
    a("s_lshl_b32 s45, s3, 11\nv_lshl_add_u32 v6, v0, 4, s45")
    NW_ = 0 if noweights else 4
    for ht in range(8):
        T, hf = ht >> 1, ht & 1
        cnt = (24 if ht <= 4 else 8*(7 - ht)) + (NW_ if (ht > wpos and ht <= wpos + 4) else 0)
        if wpos < 4 and ht > wpos: cnt = (24 if ht <= 4 else 8*(7 - ht)) + (NW_ if ht < wpos + 5 else 0)
        a(f"s_waitcnt vmcnt({cnt})")
        base = RING + 4 * ((8*ht) % 32)
        def perms(d):
            t = PT + 4*(d & 3)
            for u in range(4):
                a(f"v_perm_b32 v{t+u}, v{base + 4*(2*u+1) + (d>>1)}, v{base + 4*(2*u) + (d>>1)}, {'s7' if d & 1 else 's6'}")
        def mf(d):
            t = PT + 4*(d & 3); c = ACC + 4*(8*hf + d)
            a(f"v_mfma_f32_16x16x32_bf16 v[{c}:{c+3}], v[{SP+4*T}:{SP+4*T+3}], v[{t}:{t+3}], {'0' if T == 0 else 'v[%d:%d]' % (c, c+3)}")
        perms(0)
        for d in range(8):
            if d < 7: perms(d + 1)
            else: a("s_nop 1")
            mf(d)
        if ht < 4:
            for e in range(8): paced(64 + 8*ht + e + 32)
        if ht == wpos and not noweights:
            a(f"s_add_u32 m0, s45, {L_WO}\ns_nop 0")
            a(f"buffer_load_dwordx4 v6, s[36:39], 0 offen {wpol} lds\nbuffer_load_dwordx4 v6, s[36:39], 0 offen offset:1024 {wpol} lds")
            a(f"s_add_u32 m0, s45, {L_W2}\ns_nop 0")
            a(f"buffer_load_dwordx4 v6, s[40:43], 0 offen {wpol} lds\nbuffer_load_dwordx4 v6, s[40:43], 0 offen offset:1024 {wpol} lds")
    stamp(5)
    a(f"s_lshl_b32 s9, s3, 11\nv_and_b32 v104, 15, v0\nv_lshlrev_b32 v104, 5, v104\nv_lshrrev_b32 v105, 5, v0\nv_lshl_add_u32 v104, v105, 10, v104\nv_add_u32 v104, s9, v104")
    a("s_nop 3")
    for i in range(16): a(f"v_mov_b32 v{PT+i}, v{ACC+4*i}")
    a("s_mov_b32 exec_lo, 0x0000ffff\ns_mov_b32 exec_hi, 0x0000ffff")
    for i in range(4):
        a(f"ds_write_b128 v104, v[{PT+4*i}:{PT+4*i+3}] offset:{L_O + (i>>1)*512 + (i&1)*16}")
    a("s_mov_b64 exec, -1")
    a("v_lshlrev_b32 v104, 2, v1")
    a("s_lshr_b32 s9, s3, 2\ns_lshl_b32 s9, s9, 5\nv_mov_b32 v105, s9")
    a("s_waitcnt vmcnt(0) lgkmcnt(0)\ns_barrier")
    a(f"ds_read_b128 v[8:11], v105 offset:{L_M}\nds_read_b128 v[12:15], v105 offset:{L_M+16}")
    for j in range(4):
        a(f"ds_read2st64_b32 v[{24+2*j}:{25+2*j}], v104 offset0:{L_O//256 + 16*j} offset1:{L_O//256 + 16*j + 8}")
    a(f"ds_read_b128 v[16:19], v105 offset:{L_L}\nds_read_b128 v[20:23], v105 offset:{L_L+16}")
    a(f"s_lshl_b32 s9, s8, 12\ns_add_u32 s9, s9, {WS_H1}\nv_lshl_add_u32 v106, v1, 3, s9")
    a("v_mov_b32 v33, s34\nv_mov_b32 v37, s34\nv_mov_b32 v39, s34")
    a("s_waitcnt lgkmcnt(6)")
    a("v_max3_f32 v36, v8, v9, v10\nv_max3_f32 v36, v11, v12, v36\nv_max3_f32 v36, v13, v14, v36\nv_max_f32 v36, v15, v36")
    for j in range(8): a(f"v_sub_f32 v{8+j}, v{8+j}, v36")
    for j in range(8): a(f"v_exp_f32 v{8+j}, v{8+j}")
    a("s_waitcnt lgkmcnt(2)")
    a("v_mul_f32 v32, v8, v24")
    for j in range(1, 8): a(f"v_fmac_f32 v32, v{8+j}, v{24+j}")
    a("global_store_dwordx2 v106, v[32:33], s[22:23] sc1")
    a("s_waitcnt lgkmcnt(0)")
    a("v_mul_f32 v38, v8, v16")
    for j in range(1, 8): a(f"v_fmac_f32 v38, v{8+j}, v{16+j}")
    a("s_and_b32 s9, s3, 3\ns_cmp_eq_u32 s9, 0\ns_cbranch_scc0 L_noml")
    a(f"s_lshl_b32 s9, s8, 6\ns_lshl_b32 s10, s3, 2\ns_add_u32 s9, s9, s10\ns_add_u32 s9, s9, {WS_ML}\nv_mov_b32 v106, s9")
    a("s_mov_b64 exec, 1")
    a("global_store_dwordx4 v106, v[36:39], s[22:23] sc1")
    a("s_mov_b64 exec, -1")
    a("L_noml:")
    stamp(6)
    if notail: a("s_branch L_fin")
    a("s_cmp_ge_u32 s3, 4\ns_cbranch_scc1 L_hop2")
    WO, W2 = RING, RING + 16
    a(f"v_mov_b32 v105, 0\nds_read_b128 v[8:11], v105 offset:{L_H}\nds_read_b128 v[12:15], v105 offset:{L_H+16}")
    for d in range(16): a(f"ds_read_b32 v{W2+d}, v104 offset:{L_W2 + 896*d}")
    a("v_lshrrev_b32 v116, 4, v0\nv_and_b32 v105, 15, v0")
    a(f"s_lshl_b32 s9, s35, 17\ns_lshl_b32 s10, s2, 7\ns_add_u32 s9, s9, s10\ns_add_u32 s9, s9, {WS_H1}")
    a("v_lshlrev_b32 v106, 12, v116\nv_lshl_add_u32 v106, v105, 3, v106\nv_add_u32 v106, s9, v106")
    for t in range(1, 8): a(f"v_add_u32 v{106+t}, {16384*t}, v106")
    a(f"s_lshl_b32 s9, s35, 11\ns_lshr_b32 s10, s2, 4\ns_lshl_b32 s10, s10, 4\ns_add_u32 s9, s9, s10\ns_add_u32 s9, s9, {WS_ML}")
    a("v_lshl_add_u32 v114, v116, 6, s9")
    a("s_waitcnt lgkmcnt(0)")
    for d in range(16): a(f"ds_read_b32 v{WO+d}, v104 offset:{L_WO + 896*d}")
    WP = RING + 32
    for u in range(8):
        a(f"v_perm_b32 v{WP+16+u}, v{W2+2*u+1}, v{W2+2*u}, s6\nv_perm_b32 v{WP+24+u}, v{W2+2*u+1}, v{W2+2*u}, s7")
    for u in range(8):
        a(f"v_dot2_f32_bf16 v16, v{WP+16+u}, v{8+u}, {'0' if u == 0 else 'v16'}")
        a(f"v_dot2_f32_bf16 v18, v{WP+24+u}, v{8+u}, {'0' if u == 0 else 'v18'}")
    a("s_waitcnt lgkmcnt(0)")
    for u in range(8):
        a(f"v_perm_b32 v{WP+u}, v{WO+2*u+1}, v{WO+2*u}, s6\nv_perm_b32 v{WP+8+u}, v{WO+2*u+1}, v{WO+2*u}, s7")
    a("v_mov_b32 v17, s34\nv_mov_b32 v19, s34")
    a(f"s_mov_b32 s9, {spin}")
    a("L_h1poll:")
    if tsleep: a(f"s_sleep {tsleep}")
    OG, MG = 24, 40
    for t in range(8): a(f"global_load_dwordx4 v[{MG+4*t}:{MG+4*t+3}], v114, s[22:23] offset:{256*t} sc1")
    for t in range(8): a(f"global_load_dwordx2 v[{OG+2*t}:{OG+2*t+1}], v{106+t}, s[22:23] sc1")
    a("s_sub_u32 s9, s9, 1\ns_cbranch_scc1 L_h1ok")
    a("s_waitcnt vmcnt(0)")
    a(f"v_xor_b32 v20, s34, v{OG+1}")
    for t in range(8):
        if t: a(f"v_xor_b32 v21, s34, v{OG+2*t+1}\nv_or_b32 v20, v20, v21")
        a(f"v_xor_b32 v21, s34, v{MG+4*t+1}\nv_xor_b32 v22, s34, v{MG+4*t+3}\nv_or3_b32 v20, v20, v21, v22")
    a("v_cmp_ne_u32 vcc, 0, v20\ns_cbranch_vccnz L_h1poll")
    a("L_h1ok:")
    a("s_waitcnt vmcnt(0)")
    stamp(7)
    a(f"v_max3_f32 v20, v{MG}, v{MG+4}, v{MG+8}\nv_max3_f32 v20, v{MG+12}, v{MG+16}, v20\nv_max3_f32 v20, v{MG+20}, v{MG+24}, v20\nv_max_f32 v20, v{MG+28}, v20")
    rowreduce(20, 21, "v_max_f32")
    for t in range(8): a(f"v_sub_f32 v{MG+4*t}, v{MG+4*t}, v20")
    for t in range(8): a(f"v_exp_f32 v{MG+4*t}, v{MG+4*t}")
    a(f"v_mul_f32 v20, v{MG}, v{OG}\nv_mul_f32 v21, v{MG}, v{MG+2}")
    for t in range(1, 8): a(f"v_fmac_f32 v20, v{MG+4*t}, v{OG+2*t}\nv_fmac_f32 v21, v{MG+4*t}, v{MG+4*t+2}")
    rowreduce(20, 22)
    rowreduce(21, 22)
    a("v_rcp_f32 v21, v21\ns_nop 0\nv_mul_f32 v20, v20, v21\ns_nop 1")
    a(f"v_mov_b32_dpp v21, v20 quad_perm:[1,1,3,3] {DPPF}")
    a("v_cvt_pk_bf16_f32 v20, v20, v21\ns_nop 0")
    for u in range(8): a(f"v_readlane_b32 s{48+u}, v20, {2*u}")
    a(f"s_lshl_b32 s9, s8, 12\ns_add_u32 s9, s9, {WS_H2}\nv_lshl_add_u32 v106, v1, 4, s9\nv_cmp_gt_u32 vcc, 224, v1")
    for u in range(8):
        a(f"v_dot2_f32_bf16 v16, v{WP+u}, s{48+u}, v16\nv_dot2_f32_bf16 v18, v{WP+8+u}, s{48+u}, v18")
    a("s_mov_b64 exec, vcc\ns_nop 1")
    a("global_store_dwordx4 v106, v[16:19], s[22:23] sc1")
    a("s_mov_b64 exec, -1")
    stamp(8)
    a("s_branch L_fin")
    a("L_hop2:")
    a("s_cmp_eq_u32 s3, 4\ns_cbranch_scc0 L_fin")
    a("s_cmp_lt_u32 s2, 28\ns_cbranch_scc0 L_fin")
    a("s_mul_i32 s10, s35, 28\ns_add_u32 s10, s10, s2")
    a("s_lshl_b32 s11, s10, 2\ns_load_dword s12, s[4:5], s11")
    a(f"s_lshl_b32 s9, s10, 4\ns_add_u32 s9, s9, {WS_H2}\nv_lshl_add_u32 v106, v0, 12, s9")
    for i in range(1, 4): a(f"v_add_u32 v{106+i}, {i*64*4096}, v106")
    a(f"s_mov_b32 s9, {spin}")
    a("L_h2poll:")
    if tsleep: a(f"s_sleep {tsleep}")
    for i in range(4): a(f"global_load_dwordx4 v[{8+4*i}:{11+4*i}], v{106+i}, s[22:23] sc1")
    a("s_sub_u32 s9, s9, 1\ns_cbranch_scc1 L_h2ok")
    a("s_waitcnt vmcnt(0)")
    a("v_xor_b32 v24, s34, v9\nv_xor_b32 v25, s34, v11\nv_or_b32 v24, v24, v25")
    for i in range(1, 4): a(f"v_xor_b32 v25, s34, v{9+4*i}\nv_xor_b32 v26, s34, v{11+4*i}\nv_or3_b32 v24, v24, v25, v26")
    a("v_cmp_ne_u32 vcc, 0, v24\ns_cbranch_vccnz L_h2poll")
    a("L_h2ok:")
    a("s_waitcnt vmcnt(0) lgkmcnt(0)")
    stamp(7)
    a("v_add_f32 v8, v8, v12\nv_add_f32 v10, v10, v14\nv_add_f32 v16, v16, v20\nv_add_f32 v18, v18, v22\nv_add_f32 v8, v8, v16\nv_add_f32 v10, v10, v18")
    a("s_nop 1\nv_permlane32_swap_b32 v8, v10\nv_add_f32 v8, v8, v10")
    for m in ("quad_perm:[1,0,3,2]", "quad_perm:[2,3,0,1]", "row_ror:4", "row_ror:8"):
        a(f"s_nop 1\nv_add_f32_dpp v8, v8, v8 {m} {DPPF}")
    a("v_mov_b32 v9, v8\ns_nop 1\nv_permlane16_swap_b32 v8, v9\nv_add_f32 v8, v8, v9\ns_nop 0")
    a("v_readlane_b32 s13, v8, 32")
    a("s_lshl_b32 s14, s12, 16\ns_and_b32 s15, s12, 0xffff0000")
    a("v_add_f32 v8, s14, v8\nv_mov_b32 v9, s15\nv_add_f32 v9, s13, v9")
    a("v_cvt_pk_bf16_f32 v8, v8, v9\nv_mov_b32 v10, s11\nv_mov_b32 v11, 0\nv_mov_b32 v12, s34")
    a("s_mov_b64 exec, 1")
    a("global_store_dword v10, v8, s[20:21]")
    a("s_cmp_eq_u32 s8, 0\ns_cbranch_scc0 L_noep")
    a("global_store_dword v11, v12, s[22:23] sc1")
    a("L_noep:")
    a("s_mov_b64 exec, -1")
    stamp(8)
    a("L_fin:")
    if ts:
        a(f"s_lshl_b32 s9, s8, 3\ns_add_u32 s9, s9, s3\ns_lshl_b32 s9, s9, 6\ns_add_u32 s9, s9, {WS_TS}")
        a("s_getreg_b32 s10, hwreg(HW_REG_XCC_ID)\nv_writelane_b32 v7, s10, 15")
        a("v_lshl_add_u32 v8, v0, 2, s9\ns_mov_b64 exec, 0xffff\nglobal_store_dword v8, v7, s[22:23]")
    a("L_end:\ns_endpgm")
    a(kd(NAME, 256, 102, 256))
    return a.text()

if __name__ == "__main__":
    import argparse
    ap = argparse.ArgumentParser()
    ap.add_argument("out")
    ap.add_argument("--opt", default="")
    args = ap.parse_args()
    kw = eval("dict(" + args.opt + ")")
    src = gen(**kw)
    open(args.out, "w").write(src)
    assemble(args.out, NAME, args.out.replace(".s", ".co"))
    print("ok", args.out, len(src))
```

```python
import sys, math
from asmlib import *

NAME = "parallel_sum__gqa_block_cached__dense_activation_relu__decode_kernel"
HDR = open("parallel_sum__gqa_block_cached__dense_activation_relu__decode.s.ref").read().split("; Override launch")[0]

WS_QREC = 0x20000
WS_FREC = 0x40000
WS_ML   = 0x60000
WS_H1   = 0x100000
WS_H2   = 0x200000
WS_TS   = 0x400000
L_Q, L_H, L_M, L_L, L_O = 0, 1024, 1152, 1216, 2048
L_WO = L_O + 16384
L_W2 = L_WO + 16384
LDS_BYTES = L_W2 + 16384
DPPF = "row_mask:0xf bank_mask:0xf"
CEXP = 0x3db8aa3b

def gen(ts=False, pol="nt", wpol="nt", spin=1<<22, pace=5, presleep=0, notail=False, tsleep=0, noq=False,
        noweights=False, kpace=0, wpos=4, diag=None):
    a = Asm()
    a(HDR.rstrip())
    a(f"; @launch grid=(256,1,1) block=(512,1,1) lds={LDS_BYTES}")
    a(f""".amdgcn_target "amdgcn-amd-amdhsa--gfx950"
.text
.globl {NAME}
.p2align 8
.type {NAME},@function
{NAME}:""")
    def stamp(i):
        if ts:
            a(f"s_memrealtime s[100:101]\ns_waitcnt lgkmcnt(0)\nv_writelane_b32 v7, s100, {i}")
    RING = 128
    SP, QOP, D0, D1, XT, ACC, PT = 8, 24, 40, 56, 72, 24, 88
    a("s_cmp_ge_u32 s2, 256\ns_cbranch_scc1 L_end")
    a("s_load_dwordx16 s[4:19], s[0:1], 0")
    a("s_load_dwordx2 s[20:21], s[0:1], 64")
    a("s_load_dwordx2 s[22:23], s[0:1], 80")
    a("v_lshrrev_b32 v1, 6, v0")
    a("v_and_b32 v0, 63, v0")
    if ts: a("v_mov_b32 v7, 0")
    a("v_readfirstlane_b32 s3, v1")
    stamp(0)
    a("s_and_b32 s35, s2, 7")
    a("s_lshr_b32 s2, s2, 3")
    a("v_bfe_u32 v2, v0, 4, 1\nv_lshlrev_b32 v2, 11, v2")
    a("v_bfe_u32 v3, v0, 3, 1\nv_lshl_add_u32 v2, v3, 10, v2")
    a("v_lshrrev_b32 v3, 5, v0\nv_lshl_add_u32 v2, v3, 9, v2")
    a("v_and_b32 v6, 7, v0\nv_lshl_add_u32 v2, v6, 4, v2")
    a("v_lshrrev_b32 v3, 4, v0\nv_lshlrev_b32 v3, 9, v3\nv_and_b32 v4, 15, v0\nv_lshl_add_u32 v3, v4, 4, v3")
    a("s_lshl_b32 s33, s2, 3\ns_add_u32 s33, s33, s3\ns_lshl_b32 s33, s33, 13")
    a("s_lshl_b32 s32, s35, 24")
    a("s_mul_i32 s44, s35, 14\ns_add_u32 s44, s44, s2")
    a("s_waitcnt lgkmcnt(0)")
    a("s_load_dword s34, s[22:23], 0")
    a("s_add_u32 s24, s6, s32\ns_addc_u32 s25, s7, 0\ns_mov_b32 s26, 0x1000000\ns_mov_b32 s27, 0x20000")
    a("s_add_u32 s28, s8, s32\ns_addc_u32 s29, s9, 0\ns_mov_b32 s30, 0x1000000\ns_mov_b32 s31, 0x20000")
    a("s_mov_b32 s6, 0x05040100\ns_mov_b32 s7, 0x07060302")
    a("s_lshl_b32 s8, s35, 5\ns_add_u32 s8, s8, s2")

    cur = [None]
    def ring_load(n):
        if n < 64:
            off = (n >> 3) * (2 << 20) + ((n >> 2) & 1) * 4096 + (n & 3) * 128
            srd, vo = "s[24:27]", "v2"
        else:
            m = n - 64
            T, hf, e = m >> 4, (m >> 3) & 1, m & 7
            G, j = e >> 1, e & 1
            off = (2*T + (G >> 1)) * (2 << 20) + (G & 1) * 4096 + j * 2048 + hf * 256
            srd, vo = "s[28:31]", "v3"
        hi, lo = off & ~4095, off & 4095
        if cur[0] != hi:
            a(f"s_add_u32 s32, s33, {hi}")
            cur[0] = hi
        r = RING + 4 * (n % 32)
        a(f"buffer_load_dwordx4 v[{r}:{r+3}], {vo}, {srd}, s32 offen offset:{lo} {pol}")
    def rowreduce(v, t, op="v_add_f32"):
        a(f"v_mov_b32 v{t}, v{v}\ns_nop 1\nv_permlane16_swap_b32 v{v}, v{t}\n{op} v{v}, v{v}, v{t}")
        a(f"v_mov_b32 v{t}, v{v}\ns_nop 1\nv_permlane32_swap_b32 v{v}, v{t}\n{op} v{v}, v{v}, v{t}")
    def allreduce_par(v, t, op="v_add_f32"):
        a("s_nop 1")
        a(f"{op}_dpp v{v}, v{v}, v{v} quad_perm:[2,3,0,1] {DPPF}\ns_nop 1")
        a(f"{op}_dpp v{v}, v{v}, v{v} row_ror:4 {DPPF}\ns_nop 1")
        a(f"{op}_dpp v{v}, v{v}, v{v} row_ror:8 {DPPF}")
        rowreduce(v, t, op)

    if noq: a("s_branch L_streamer")
    a("s_cmp_ge_u32 s3, 2\ns_cbranch_scc1 L_streamer")
    a("s_cmp_eq_u32 s3, 0\ns_cbranch_scc1 L_gemv")
    a("s_cmp_ge_u32 s2, 14\ns_cbranch_scc1 L_streamer")
    a("L_gemv:")
    a("s_setprio 3")
    a("s_lshl_b32 s9, s35, 3\ns_and_b32 s45, s2, 7\ns_add_u32 s9, s9, s45")
    a("s_lshr_b32 s45, s2, 3\ns_lshr_b32 s46, s44, 2\ns_and_b32 s47, s44, 3")
    a(f"s_lshl_b32 s48, s8, 9\ns_add_u32 s48, s48, {WS_QREC}\ns_lshl_b32 s49, s44, 9\ns_add_u32 s49, s49, {WS_FREC}")
    a("s_mov_b32 s38, 1605632\ns_mov_b32 s41, 3584")
    a("s_cmp_eq_u32 s3, 0")
    a("s_cselect_b32 s36, s10, s16\ns_cselect_b32 s37, s11, s17\ns_cselect_b32 s38, 3670016, s38\ns_mov_b32 s39, 0x20000")
    a("s_cselect_b32 s41, 8192, s41")
    a("s_cselect_b32 s42, s9, s46")
    a("s_cselect_b32 s45, s45, s47")
    a("s_cselect_b32 s48, s48, s49")
    a("v_lshrrev_b32 v4, 1, v0\nv_mul_u32_u24 v5, 28, v4")
    a("global_load_dwordx4 v[8:11], v5, s[4:5]\nglobal_load_dwordx3 v[12:14], v5, s[4:5] offset:16")
    a("v_lshrrev_b32 v4, 3, v0\ns_mul_i32 s46, s45, 224\nv_mul_u32_u24 v5, 28, v4\nv_add_u32 v5, s46, v5")
    a("global_load_dwordx4 v[56:59], v5, s[4:5]\nglobal_load_dwordx3 v[60:62], v5, s[4:5] offset:16")
    a("s_mul_i32 s43, s41, 14\nv_mul_lo_u32 v5, v4, s43\nv_lshl_add_u32 v5, v6, 4, v5")
    a("s_lshl_b32 s42, s42, 7\ns_mul_i32 s46, s45, 112\ns_mul_i32 s46, s46, s41\ns_add_u32 s42, s42, s46")
    WB = 128
    for i in range(14):
        a(f"buffer_load_dwordx4 v[{WB+4*i}:{WB+4*i+3}], v5, s[36:39], s42 offen {wpol}")
        if i < 13: a("s_add_u32 s42, s42, s41")
    a("s_waitcnt vmcnt(16)")
    XF = 16
    for u in range(7):
        a(f"v_lshlrev_b32 v{XF+2*u}, 16, v{8+u}\nv_and_b32 v{XF+2*u+1}, 0xffff0000, v{8+u}")
    a(f"v_add_f32 v30, v{XF}, v{XF+1}")
    for i in range(2, 14): a(f"v_add_f32 v30, v30, v{XF+i}")
    allreduce_par(30, 31)
    a("v_mul_f32 v30, 0x3b124925, v30")
    a(f"v_sub_f32 v32, v{XF}, v30\nv_mul_f32 v33, v32, v32")
    for i in range(1, 14): a(f"v_sub_f32 v32, v{XF+i}, v30\nv_fmac_f32 v33, v32, v32")
    allreduce_par(33, 31)
    a("v_mul_f32 v33, 0x3b124925, v33")
    a("v_cvt_pk_bf16_f32 v30, v30, v33")
    a("v_and_b32 v33, 0xffff0000, v30\nv_lshlrev_b32 v30, 16, v30")
    a("v_add_f32 v33, 0x3727c5ac, v33")
    a("v_cvt_pk_bf16_f32 v33, v33, v33\nv_and_b32 v33, 0xffff0000, v33")
    a("v_sqrt_f32 v33, v33\ns_nop 0")
    a("v_cvt_pk_bf16_f32 v33, v33, v33\nv_and_b32 v33, 0xffff0000, v33")
    a("v_rcp_f32 v33, v33")
    a("s_waitcnt vmcnt(14)")
    for u in range(7):
        a(f"v_lshlrev_b32 v16, 16, v{56+u}\nv_and_b32 v17, 0xffff0000, v{56+u}")
        a(f"v_sub_f32 v16, v16, v30\nv_sub_f32 v17, v17, v30")
        a(f"v_cvt_pk_bf16_f32 v17, v16, v17")
        a(f"v_lshlrev_b32 v16, 16, v17\nv_and_b32 v17, 0xffff0000, v17")
        a(f"v_mul_f32 v16, v16, v33\nv_mul_f32 v17, v17, v33")
        a(f"v_cvt_pk_bf16_f32 v{8+u}, v16, v17")
    GA = 40
    for u in range(7):
        a(f"s_waitcnt vmcnt({12-2*u})")
        for w in range(4):
            r0, r1 = WB + 8*u + w, WB + 8*u + 4 + w
            a(f"v_perm_b32 v{48+2*w}, v{r1}, v{r0}, s6\nv_perm_b32 v{49+2*w}, v{r1}, v{r0}, s7")
        for c in range(8):
            a(f"v_dot2_f32_bf16 v{GA+c}, v{48+c}, v{8+u}, {'0' if u == 0 else 'v%d' % (GA+c)}")
    a("s_waitcnt lgkmcnt(0)\ns_add_u32 s34, s34, 1\ns_nop 0")
    for c in range(4): a(f"v_permlane32_swap_b32 v{GA+c}, v{GA+c+4}")
    for c in range(4): a(f"v_add_f32 v{GA+c}, v{GA+c}, v{GA+c+4}")
    a("v_lshrrev_b32 v4, 4, v0")
    for c in range(2): a(f"v_permlane16_swap_b32 v{GA+c}, v{GA+c+2}")
    for c in range(2): a(f"v_add_f32 v{GA+c}, v{GA+c}, v{GA+c+2}")
    a("v_lshl_add_u32 v4, v6, 2, v4")
    a(f"v_add_f32_dpp v{GA}, v{GA}, v{GA} row_ror:8 {DPPF}")
    a(f"v_add_f32_dpp v{GA+2}, v{GA+1}, v{GA+1} row_ror:8 {DPPF}")
    a(f"v_mov_b32 v{GA+1}, s34\nv_mov_b32 v{GA+3}, s34")
    a("v_lshl_add_u32 v4, v4, 4, s48")
    a("s_mov_b32 exec_lo, 0x00ff00ff\ns_mov_b32 exec_hi, 0x00ff00ff")
    a(f"global_store_dwordx4 v4, v[{GA}:{GA+3}], s[22:23] sc1")
    a("s_mov_b64 exec, -1")
    stamp(1)
    a("s_cmp_eq_u32 s3, 0\ns_cbranch_scc0 L_streamer1")
    a(f"s_lshl_b32 s9, s35, 14\ns_add_u32 s9, s9, {WS_QREC}")
    a("v_lshl_add_u32 v8, v0, 4, s9\nv_add_u32 v9, 4096, v8\nv_add_u32 v10, 8192, v8\nv_add_u32 v11, 12288, v8")
    a("s_sub_u32 s45, s44, 18\ns_and_b32 s46, s45, 3\ns_andn2_b32 s45, s45, 3")
    a(f"s_lshl_b32 s45, s45, 9\ns_lshl_b32 s46, s46, 7\ns_add_u32 s45, s45, s46\ns_add_u32 s45, s45, {WS_FREC}")
    a("s_cmp_ge_u32 s2, 18\ns_cselect_b32 s45, s45, s9")
    a("v_lshrrev_b32 v12, 4, v0\nv_lshlrev_b32 v12, 9, v12\nv_lshl_add_u32 v12, v6, 4, v12\nv_add_u32 v12, s45, v12")
    a(f"s_mov_b32 s9, {spin}")
    if presleep: a(f"s_sleep {presleep}")
    a("L_gpoll:")
    GB = 128
    for rq in range(4):
        for j in range(4):
            r = GB + 16*j + 4*rq
            a(f"global_load_dwordx4 v[{r}:{r+3}], v{8+rq}, s[22:23] offset:{1024*j} sc1")
    a(f"global_load_dwordx4 v[{GB+64}:{GB+67}], v12, s[22:23] sc1")
    a("s_sub_u32 s9, s9, 1\ns_cbranch_scc1 L_gok")
    a("v_mov_b32 v16, 0")
    for i in range(17):
        rq, j = i >> 2, i & 3
        r = GB + 16*j + 4*rq if i < 16 else GB + 64
        a(f"s_waitcnt vmcnt({16-i})")
        a(f"v_xor_b32 v17, s34, v{r+1}\nv_xor_b32 v18, s34, v{r+3}\nv_or3_b32 v16, v16, v17, v18")
    a("v_cmp_ne_u32 vcc, 0, v16\ns_cbranch_vccnz L_gpoll")
    a("L_gok:")
    a("s_waitcnt vmcnt(0)")
    a("v_lshlrev_b32 v4, 2, v0")
    for j in range(4):
        r = GB + 16*j
        a(f"v_add_f32 v{r}, v{r}, v{r+4}\nv_add_f32 v{r+2}, v{r+2}, v{r+6}\nv_add_f32 v{r+8}, v{r+8}, v{r+12}\nv_add_f32 v{r+10}, v{r+10}, v{r+14}")
        a(f"v_add_f32 v{r}, v{r}, v{r+8}\nv_add_f32 v{r+2}, v{r+2}, v{r+10}")
        a(f"v_cvt_pk_bf16_f32 v{r}, v{r}, v{r+2}")
        a(f"ds_write_b32 v4, v{r} offset:{L_Q + 256*j}")
    rowreduce(GB+64, 16)
    rowreduce(GB+66, 16)
    a(f"v_max_f32 v{GB+64}, 0, v{GB+64}\nv_max_f32 v{GB+66}, 0, v{GB+66}\nv_cvt_pk_bf16_f32 v16, v{GB+64}, v{GB+66}")
    a("s_mov_b64 exec, 0xff")
    a(f"ds_write_b32 v4, v16 offset:{L_H}")
    a("s_mov_b64 exec, -1")
    a("s_waitcnt lgkmcnt(0)")
    stamp(2)
    a("s_barrier")
    a("s_setprio 0")
    cur[0] = None
    for n in range(32): ring_load(n)
    a("s_branch L_main")
    a("L_streamer:")
    a("s_waitcnt lgkmcnt(0)\ns_add_u32 s34, s34, 1") if False else None
    cur[0] = None
    for n in range(pace): ring_load(n)
    a("s_waitcnt lgkmcnt(0)\ns_add_u32 s34, s34, 1")
    a("s_branch L_streamer2")
    a("L_streamer1:")
    a("s_setprio 0")
    cur[0] = None
    for n in range(pace): ring_load(n)
    a("L_streamer2:")
    cur[0] = None
    for n in range(pace, 32):
        a(f"s_waitcnt vmcnt({pace-1})")
        ring_load(n)
    stamp(2)
    a("s_barrier")
    a("L_main:")
    for i in range(16): a(f"v_mov_b32 v{QOP+i}, 0")
    a("v_bfe_u32 v4, v0, 3, 1\nv_lshlrev_b32 v4, 9, v4\nv_lshl_add_u32 v4, v6, 4, v4")
    a("s_mov_b32 exec_lo, 0x0000ffff\ns_mov_b32 exec_hi, 0xffff0000")
    for t in range(4): a(f"ds_read_b128 v[{QOP+4*t}:{QOP+4*t+3}], v4 offset:{L_Q+128*t}")
    a("s_mov_b64 exec, -1")
    a("v_mov_b32 v4, 0xff800000")
    a("s_waitcnt lgkmcnt(0)")
    stamp(3)
    def extract(g):
        D = (D0, D1)[g & 1]
        for q in range(4):
            a(f"v_add_f32_dpp v{XT+q}, v{D+4*q+1}, v{D+4*q} quad_perm:[1,1,1,1] {DPPF}")
        for q in range(4):
            a(f"v_add_f32_dpp v{XT+q}, v{D+4*q+2}, v{XT+q} quad_perm:[2,2,2,2] {DPPF}")
        for q in range(4):
            a(f"v_add_f32_dpp v{XT+q}, v{D+4*q+3}, v{XT+q} quad_perm:[3,3,3,3] {DPPF}")
        a(f"s_nop 1\nv_permlane32_swap_b32 v{XT}, v{XT+1}\nv_permlane32_swap_b32 v{XT+2}, v{XT+3}\ns_nop 0")
        a(f"v_add_f32_dpp v{XT}, v{XT+1}, v{XT} row_shl:4 {DPPF} bound_ctrl:0")
        a(f"v_add_f32_dpp v{XT+2}, v{XT+3}, v{XT+2} row_shl:4 {DPPF} bound_ctrl:0")
        a(f"v_max3_f32 v4, v{XT}, v{XT+2}, v4")
        a(f"v_cvt_pk_bf16_f32 v{SP+g}, v{XT}, v{XT+2}")
    def paced(n):
        if kpace: a(f"s_waitcnt vmcnt({kpace-1})")
        ring_load(n)
    cur[0] = None
    for g in range(16):
        D = (D0, D1)[g & 1]
        a("s_waitcnt vmcnt(28)")
        for t in range(4):
            r = RING + 4 * ((4*g + t) % 32)
            a(f"v_mfma_f32_32x32x16_bf16 v[{D}:{D+15}], v[{r}:{r+3}], v[{QOP+4*t}:{QOP+4*t+3}], {'0' if t == 0 else 'v[%d:%d]' % (D, D+15)}")
        for t in range(4): paced(4*g + t + 32)
        if g > 0: extract(g - 1)
    a("s_nop 7")
    extract(15)
    stamp(4)
    rowreduce(4, 5, "v_max_f32")
    a("v_cvt_pk_bf16_f32 v4, v4, v4\nv_and_b32 v4, 0xffff0000, v4")
    a(f"s_mov_b32 s9, {CEXP}")
    a("v_mul_f32 v4, s9, v4")
    a("v_mov_b32 v5, 0")
    for i in range(16):
        t0, t1 = PT + 2*(i & 3), PT + 2*(i & 3) + 1
        a(f"v_lshlrev_b32 v{t0}, 16, v{SP+i}\nv_and_b32 v{t1}, 0xffff0000, v{SP+i}")
        a(f"v_fma_f32 v{t0}, v{t0}, s9, -v4\nv_fma_f32 v{t1}, v{t1}, s9, -v4")
        a(f"v_exp_f32 v{t0}, v{t0}\nv_exp_f32 v{t1}, v{t1}")
        a(f"v_add_f32 v5, v5, v{t0}\nv_add_f32 v5, v5, v{t1}")
        a(f"v_cvt_pk_bf16_f32 v{SP+i}, v{t0}, v{t1}")
    rowreduce(5, 6)
    a("s_lshl_b32 s9, s3, 2\nv_lshl_add_u32 v6, v0, 2, s9")
    a("s_mov_b64 exec, 0x101")
    a(f"ds_write_b32 v6, v4 offset:{L_M}\nds_write_b32 v6, v5 offset:{L_L}")
    a("s_mov_b64 exec, -1")
    a("s_sub_u32 s9, s44, 18\ns_mul_i32 s9, s9, 14336")
    a("s_cmp_ge_u32 s2, 18\ns_cselect_b32 s9, s9, 0\ns_cselect_b32 s42, 14336, 0")
    a("s_add_u32 s40, s18, s9\ns_addc_u32 s41, s19, 0\ns_mov_b32 s43, 0x20000")
    a("s_mul_i32 s9, s8, 14336")
    a("s_add_u32 s36, s12, s9\ns_addc_u32 s37, s13, 0\ns_mov_b32 s38, 14336\ns_mov_b32 s39, 0x20000")
    a("s_lshl_b32 s9, s3, 6\nv_add_u32 v1, s9, v0")
    a("s_lshl_b32 s45, s3, 11\nv_lshl_add_u32 v6, v0, 4, s45")
    NW_ = 0 if noweights else 4
    for ht in range(8):
        T, hf = ht >> 1, ht & 1
        cnt = (24 if ht <= 4 else 8*(7 - ht)) + (NW_ if (ht > wpos and ht <= wpos + 4) else 0)
        if wpos < 4 and ht > wpos: cnt = (24 if ht <= 4 else 8*(7 - ht)) + (NW_ if ht < wpos + 5 else 0)
        a(f"s_waitcnt vmcnt({cnt})")
        base = RING + 4 * ((8*ht) % 32)
        def perms(d):
            t = PT + 4*(d & 3)
            for u in range(4):
                a(f"v_perm_b32 v{t+u}, v{base + 4*(2*u+1) + (d>>1)}, v{base + 4*(2*u) + (d>>1)}, {'s7' if d & 1 else 's6'}")
        def mf(d):
            t = PT + 4*(d & 3); c = ACC + 4*(8*hf + d)
            a(f"v_mfma_f32_16x16x32_bf16 v[{c}:{c+3}], v[{SP+4*T}:{SP+4*T+3}], v[{t}:{t+3}], {'0' if T == 0 else 'v[%d:%d]' % (c, c+3)}")
        perms(0)
        for d in range(8):
            if d < 7: perms(d + 1)
            else: a("s_nop 1")
            mf(d)
        if ht < 4:
            for e in range(8): paced(64 + 8*ht + e + 32)
        if ht == wpos and not noweights:
            a(f"s_add_u32 m0, s45, {L_WO}\ns_nop 0")
            a(f"buffer_load_dwordx4 v6, s[36:39], 0 offen {wpol} lds\nbuffer_load_dwordx4 v6, s[36:39], 0 offen offset:1024 {wpol} lds")
            a(f"s_add_u32 m0, s45, {L_W2}\ns_nop 0")
            a(f"buffer_load_dwordx4 v6, s[40:43], 0 offen {wpol} lds\nbuffer_load_dwordx4 v6, s[40:43], 0 offen offset:1024 {wpol} lds")
    stamp(5)
    a(f"s_lshl_b32 s9, s3, 11\nv_and_b32 v104, 15, v0\nv_lshlrev_b32 v104, 5, v104\nv_lshrrev_b32 v105, 5, v0\nv_lshl_add_u32 v104, v105, 10, v104\nv_add_u32 v104, s9, v104")
    a("s_nop 3")
    for i in range(16): a(f"v_mov_b32 v{PT+i}, v{ACC+4*i}")
    a("s_mov_b32 exec_lo, 0x0000ffff\ns_mov_b32 exec_hi, 0x0000ffff")
    for i in range(4):
        a(f"ds_write_b128 v104, v[{PT+4*i}:{PT+4*i+3}] offset:{L_O + (i>>1)*512 + (i&1)*16}")
    a("s_mov_b64 exec, -1")
    a("v_lshlrev_b32 v104, 2, v1")
    a("s_lshr_b32 s9, s3, 2\ns_lshl_b32 s9, s9, 5\nv_mov_b32 v105, s9")
    a("s_waitcnt vmcnt(0) lgkmcnt(0)\ns_barrier")
    a(f"ds_read_b128 v[8:11], v105 offset:{L_M}\nds_read_b128 v[12:15], v105 offset:{L_M+16}")
    for j in range(4):
        a(f"ds_read2st64_b32 v[{24+2*j}:{25+2*j}], v104 offset0:{L_O//256 + 16*j} offset1:{L_O//256 + 16*j + 8}")
    a(f"ds_read_b128 v[16:19], v105 offset:{L_L}\nds_read_b128 v[20:23], v105 offset:{L_L+16}")
    a(f"s_lshl_b32 s9, s8, 12\ns_add_u32 s9, s9, {WS_H1}\nv_lshl_add_u32 v106, v1, 3, s9")
    a("v_mov_b32 v33, s34\nv_mov_b32 v37, s34\nv_mov_b32 v39, s34")
    a("s_waitcnt lgkmcnt(6)")
    a("v_max3_f32 v36, v8, v9, v10\nv_max3_f32 v36, v11, v12, v36\nv_max3_f32 v36, v13, v14, v36\nv_max_f32 v36, v15, v36")
    for j in range(8): a(f"v_sub_f32 v{8+j}, v{8+j}, v36")
    for j in range(8): a(f"v_exp_f32 v{8+j}, v{8+j}")
    a("s_waitcnt lgkmcnt(2)")
    a("v_mul_f32 v32, v8, v24")
    for j in range(1, 8): a(f"v_fmac_f32 v32, v{8+j}, v{24+j}")
    a("global_store_dwordx2 v106, v[32:33], s[22:23] sc1")
    a("s_waitcnt lgkmcnt(0)")
    a("v_mul_f32 v38, v8, v16")
    for j in range(1, 8): a(f"v_fmac_f32 v38, v{8+j}, v{16+j}")
    a("s_and_b32 s9, s3, 3\ns_cmp_eq_u32 s9, 0\ns_cbranch_scc0 L_noml")
    a(f"s_lshl_b32 s9, s8, 6\ns_lshl_b32 s10, s3, 2\ns_add_u32 s9, s9, s10\ns_add_u32 s9, s9, {WS_ML}\nv_mov_b32 v106, s9")
    a("s_mov_b64 exec, 1")
    a("global_store_dwordx4 v106, v[36:39], s[22:23] sc1")
    a("s_mov_b64 exec, -1")
    a("L_noml:")
    stamp(6)
    if notail: a("s_branch L_fin")
    a("s_cmp_ge_u32 s3, 4\ns_cbranch_scc1 L_hop2")
    WO, W2 = RING, RING + 16
    a(f"v_mov_b32 v105, 0\nds_read_b128 v[8:11], v105 offset:{L_H}\nds_read_b128 v[12:15], v105 offset:{L_H+16}")
    for d in range(16): a(f"ds_read_b32 v{W2+d}, v104 offset:{L_W2 + 896*d}")
    a("v_lshrrev_b32 v116, 4, v0\nv_and_b32 v105, 15, v0")
    a(f"s_lshl_b32 s9, s35, 17\ns_lshl_b32 s10, s2, 7\ns_add_u32 s9, s9, s10\ns_add_u32 s9, s9, {WS_H1}")
    a("v_lshlrev_b32 v106, 12, v116\nv_lshl_add_u32 v106, v105, 3, v106\nv_add_u32 v106, s9, v106")
    for t in range(1, 8): a(f"v_add_u32 v{106+t}, {16384*t}, v106")
    a(f"s_lshl_b32 s9, s35, 11\ns_lshr_b32 s10, s2, 4\ns_lshl_b32 s10, s10, 4\ns_add_u32 s9, s9, s10\ns_add_u32 s9, s9, {WS_ML}")
    a("v_lshl_add_u32 v114, v116, 6, s9")
    a("s_waitcnt lgkmcnt(0)")
    for d in range(16): a(f"ds_read_b32 v{WO+d}, v104 offset:{L_WO + 896*d}")
    WP = RING + 32
    for u in range(8):
        a(f"v_perm_b32 v{WP+16+u}, v{W2+2*u+1}, v{W2+2*u}, s6\nv_perm_b32 v{WP+24+u}, v{W2+2*u+1}, v{W2+2*u}, s7")
    for u in range(8):
        a(f"v_dot2_f32_bf16 v16, v{WP+16+u}, v{8+u}, {'0' if u == 0 else 'v16'}")
        a(f"v_dot2_f32_bf16 v18, v{WP+24+u}, v{8+u}, {'0' if u == 0 else 'v18'}")
    a("s_waitcnt lgkmcnt(0)")
    for u in range(8):
        a(f"v_perm_b32 v{WP+u}, v{WO+2*u+1}, v{WO+2*u}, s6\nv_perm_b32 v{WP+8+u}, v{WO+2*u+1}, v{WO+2*u}, s7")
    a("v_mov_b32 v17, s34\nv_mov_b32 v19, s34")
    a(f"s_mov_b32 s9, {spin}")
    a("L_h1poll:")
    if tsleep: a(f"s_sleep {tsleep}")
    OG, MG = 24, 40
    for t in range(8): a(f"global_load_dwordx4 v[{MG+4*t}:{MG+4*t+3}], v114, s[22:23] offset:{256*t} sc1")
    for t in range(8): a(f"global_load_dwordx2 v[{OG+2*t}:{OG+2*t+1}], v{106+t}, s[22:23] sc1")
    a("s_sub_u32 s9, s9, 1\ns_cbranch_scc1 L_h1ok")
    a("s_waitcnt vmcnt(0)")
    a(f"v_xor_b32 v20, s34, v{OG+1}")
    for t in range(8):
        if t: a(f"v_xor_b32 v21, s34, v{OG+2*t+1}\nv_or_b32 v20, v20, v21")
        a(f"v_xor_b32 v21, s34, v{MG+4*t+1}\nv_xor_b32 v22, s34, v{MG+4*t+3}\nv_or3_b32 v20, v20, v21, v22")
    a("v_cmp_ne_u32 vcc, 0, v20\ns_cbranch_vccnz L_h1poll")
    a("L_h1ok:")
    a("s_waitcnt vmcnt(0)")
    stamp(7)
    a(f"v_max3_f32 v20, v{MG}, v{MG+4}, v{MG+8}\nv_max3_f32 v20, v{MG+12}, v{MG+16}, v20\nv_max3_f32 v20, v{MG+20}, v{MG+24}, v20\nv_max_f32 v20, v{MG+28}, v20")
    rowreduce(20, 21, "v_max_f32")
    for t in range(8): a(f"v_sub_f32 v{MG+4*t}, v{MG+4*t}, v20")
    for t in range(8): a(f"v_exp_f32 v{MG+4*t}, v{MG+4*t}")
    a(f"v_mul_f32 v20, v{MG}, v{OG}\nv_mul_f32 v21, v{MG}, v{MG+2}")
    for t in range(1, 8): a(f"v_fmac_f32 v20, v{MG+4*t}, v{OG+2*t}\nv_fmac_f32 v21, v{MG+4*t}, v{MG+4*t+2}")
    rowreduce(20, 22)
    rowreduce(21, 22)
    a("v_rcp_f32 v21, v21\ns_nop 0\nv_mul_f32 v20, v20, v21\ns_nop 1")
    a(f"v_mov_b32_dpp v21, v20 quad_perm:[1,1,3,3] {DPPF}")
    a("v_cvt_pk_bf16_f32 v20, v20, v21\ns_nop 0")
    for u in range(8): a(f"v_readlane_b32 s{48+u}, v20, {2*u}")
    a(f"s_lshl_b32 s9, s8, 12\ns_add_u32 s9, s9, {WS_H2}\nv_lshl_add_u32 v106, v1, 4, s9\nv_cmp_gt_u32 vcc, 224, v1")
    for u in range(8):
        a(f"v_dot2_f32_bf16 v16, v{WP+u}, s{48+u}, v16\nv_dot2_f32_bf16 v18, v{WP+8+u}, s{48+u}, v18")
    a("s_mov_b64 exec, vcc\ns_nop 1")
    a("global_store_dwordx4 v106, v[16:19], s[22:23] sc1")
    a("s_mov_b64 exec, -1")
    stamp(8)
    a("s_branch L_fin")
    a("L_hop2:")
    a("s_cmp_eq_u32 s3, 4\ns_cbranch_scc0 L_fin")
    a("s_cmp_lt_u32 s2, 28\ns_cbranch_scc0 L_fin")
    a("s_mul_i32 s10, s35, 28\ns_add_u32 s10, s10, s2")
    a("s_lshl_b32 s11, s10, 2\ns_load_dword s12, s[4:5], s11")
    a(f"s_lshl_b32 s9, s10, 4\ns_add_u32 s9, s9, {WS_H2}\nv_lshl_add_u32 v106, v0, 12, s9")
    for i in range(1, 4): a(f"v_add_u32 v{106+i}, {i*64*4096}, v106")
    a(f"s_mov_b32 s9, {spin}")
    a("L_h2poll:")
    if tsleep: a(f"s_sleep {tsleep}")
    for i in range(4): a(f"global_load_dwordx4 v[{8+4*i}:{11+4*i}], v{106+i}, s[22:23] sc1")
    a("s_sub_u32 s9, s9, 1\ns_cbranch_scc1 L_h2ok")
    a("s_waitcnt vmcnt(0)")
    a("v_xor_b32 v24, s34, v9\nv_xor_b32 v25, s34, v11\nv_or_b32 v24, v24, v25")
    for i in range(1, 4): a(f"v_xor_b32 v25, s34, v{9+4*i}\nv_xor_b32 v26, s34, v{11+4*i}\nv_or3_b32 v24, v24, v25, v26")
    a("v_cmp_ne_u32 vcc, 0, v24\ns_cbranch_vccnz L_h2poll")
    a("L_h2ok:")
    a("s_waitcnt vmcnt(0) lgkmcnt(0)")
    stamp(7)
    a("v_add_f32 v8, v8, v12\nv_add_f32 v10, v10, v14\nv_add_f32 v16, v16, v20\nv_add_f32 v18, v18, v22\nv_add_f32 v8, v8, v16\nv_add_f32 v10, v10, v18")
    a("s_nop 1\nv_permlane32_swap_b32 v8, v10\nv_add_f32 v8, v8, v10")
    for m in ("quad_perm:[1,0,3,2]", "quad_perm:[2,3,0,1]", "row_ror:4", "row_ror:8"):
        a(f"s_nop 1\nv_add_f32_dpp v8, v8, v8 {m} {DPPF}")
    a("v_mov_b32 v9, v8\ns_nop 1\nv_permlane16_swap_b32 v8, v9\nv_add_f32 v8, v8, v9\ns_nop 0")
    a("v_readlane_b32 s13, v8, 32")
    a("s_lshl_b32 s14, s12, 16\ns_and_b32 s15, s12, 0xffff0000")
    a("v_add_f32 v8, s14, v8\nv_mov_b32 v9, s15\nv_add_f32 v9, s13, v9")
    a("v_cvt_pk_bf16_f32 v8, v8, v9\nv_mov_b32 v10, s11\nv_mov_b32 v11, 0\nv_mov_b32 v12, s34")
    a("s_mov_b64 exec, 1")
    a("global_store_dword v10, v8, s[20:21]")
    a("s_cmp_eq_u32 s8, 0\ns_cbranch_scc0 L_noep")
    a("global_store_dword v11, v12, s[22:23] sc1")
    a("L_noep:")
    a("s_mov_b64 exec, -1")
    stamp(8)
    if diag is not None:
        a(f"v_readlane_b32 s40, v7, {diag}\nv_readlane_b32 s41, v7, 0\ns_sub_u32 s40, s40, s41\ns_add_u32 s40, s40, s100")
        a("L_dspin:\ns_memrealtime s[42:43]\ns_waitcnt lgkmcnt(0)\ns_sub_u32 s42, s42, s40\ns_cmp_lt_i32 s42, 0\ns_cbranch_scc1 L_dspin")
    a("L_fin:")
    if ts:
        a(f"s_lshl_b32 s9, s8, 3\ns_add_u32 s9, s9, s3\ns_lshl_b32 s9, s9, 6\ns_add_u32 s9, s9, {WS_TS}")
        a("s_getreg_b32 s10, hwreg(HW_REG_XCC_ID)\nv_writelane_b32 v7, s10, 15")
        a("v_lshl_add_u32 v8, v0, 2, s9\ns_mov_b64 exec, 0xffff\nglobal_store_dword v8, v7, s[22:23]")
    a("L_end:\ns_endpgm")
    a(kd(NAME, 256, 102, 256))
    return a.text()

if __name__ == "__main__":
    import argparse
    ap = argparse.ArgumentParser()
    ap.add_argument("out")
    ap.add_argument("--opt", default="")
    args = ap.parse_args()
    kw = eval("dict(" + args.opt + ")")
    src = gen(**kw)
    open(args.out, "w").write(src)
    assemble(args.out, NAME, args.out.replace(".s", ".co"))
    print("ok", args.out, len(src))
```

```python
import sys, math
from asmlib import *

NAME = "parallel_sum__gqa_block_cached__dense_activation_relu__decode_kernel"
HDR = open("parallel_sum__gqa_block_cached__dense_activation_relu__decode.s.ref").read().split("; Override launch")[0]

WS_QREC = 0x20000
WS_FREC = 0x40000
WS_ML   = 0x60000
WS_H1   = 0x100000
WS_H2   = 0x200000
WS_TS   = 0x400000
WS_NEAR = 0x800000
L_Q, L_H, L_M, L_L, L_F, L_C, L_P, L_G, L_T, L_X, L_O = 0, 1024, 1152, 1216, 1280, 1344, 1348, 1352, 1356, 1360, 2048
LDS_BYTES = L_O + 16384
DPPF = "row_mask:0xf bank_mask:0xf"
CEXP = 0x3db8aa3b
NV = 168

def gen(ts=False, pol="nt", wpol="nt", spin=1<<22, W=3, burst=3, npre=27, NGH=8, notail=False, noq=False, noweights=False,
        diag=None, diag0=0, wpace=4, fslot=118, gsleep=0, hprio=3, lastpair=True, wlate=False, presleep=0, nogather=False, Wpre=None, noffn=False, prog=False, noml=0, mlsleep=16, mlpre=0, hm="x", qt=15, mt=96, wt=None, h1sleep=0, h2sleep=0, nohop2=False, onepoll=False, nost2=False, dual1=True, dual2=True, endprio=True, h1pre=0, pre1=False, pre2=False, pret=False):
    a = Asm()
    a(HDR.rstrip())
    a(f"; @launch grid=(256,1,1) block=(768,1,1) lds={LDS_BYTES}")
    a(f""".amdgcn_target "amdgcn-amd-amdhsa--gfx950"
.text
.globl {NAME}
.p2align 8
.type {NAME},@function
{NAME}:""")
    def stamp(i):
        if ts:
            a(f"s_memrealtime s[100:101]\ns_waitcnt lgkmcnt(0)\nv_writelane_b32 v7, s100, {i}")
    def rowreduce(v, t, op="v_add_f32"):
        a(f"v_mov_b32 v{t}, v{v}\ns_nop 1\nv_permlane16_swap_b32 v{v}, v{t}\n{op} v{v}, v{v}, v{t}")
        a(f"v_mov_b32 v{t}, v{v}\ns_nop 1\nv_permlane32_swap_b32 v{v}, v{t}\n{op} v{v}, v{v}, v{t}")
    def dppred(v, modes, op="v_add_f32"):
        for m in modes:
            a(f"s_nop 1\n{op}_dpp v{v}, v{v}, v{v} {m} {DPPF}")
    def lds_wait(off, cmp, val, lab, bound=None):
        a(f"s_mov_b32 s10, {bound or spin}\nv_mov_b32 v38, 0")
        a(f"{lab}:\ns_sleep 4\nds_read_b32 v39, v38 offset:{off}\ns_sub_u32 s10, s10, 1\ns_cbranch_scc1 {lab}k")
        a(f"s_waitcnt lgkmcnt(0)\n{cmp} vcc, {val}, v39\ns_cbranch_vccnz {lab}\n{lab}k:\ns_waitcnt lgkmcnt(0)")
    SP, QOP, D, XT, ACC, PT = 8, 24, 40, 56, 24, 88
    a("s_cmp_ge_u32 s2, 256\ns_cbranch_scc1 L_end")
    a("s_load_dwordx16 s[4:19], s[0:1], 0")
    a("s_load_dwordx2 s[20:21], s[0:1], 64")
    a("s_load_dwordx2 s[22:23], s[0:1], 80")
    a("v_lshrrev_b32 v1, 6, v0")
    a("v_and_b32 v0, 63, v0")
    if ts: a("v_mov_b32 v7, 0")
    a("v_readfirstlane_b32 s3, v1")
    stamp(0)
    if hm == "x":
        a("s_and_b32 s35, s2, 7")
        a("s_lshr_b32 s2, s2, 3")
    else:
        a("s_and_b32 s35, s2, 7\ns_lshr_b32 s46, s2, 6\ns_lshl_b32 s46, s46, 3\ns_add_u32 s46, s46, s35\ns_bfe_u32 s35, s2, 0x30003\ns_mov_b32 s2, s46")
    a("v_and_b32 v6, 7, v0")
    a("s_lshl_b32 s45, s35, 5\ns_add_u32 s45, s45, s2")
    a("s_cmp_ge_u32 s3, 8\ns_cbranch_scc1 L_helper")
    a("v_bfe_u32 v2, v0, 4, 1\nv_lshlrev_b32 v2, 11, v2")
    a("v_bfe_u32 v3, v0, 3, 1\nv_lshl_add_u32 v2, v3, 10, v2")
    a("v_lshrrev_b32 v3, 5, v0\nv_lshl_add_u32 v2, v3, 9, v2")
    a("v_lshl_add_u32 v2, v6, 4, v2")
    lg = int(math.log2(NGH)); nwv = 256 // NGH; GS = nwv * 4096
    a(f"s_and_b32 s33, s2, {NGH-1}\ns_lshl_b32 s33, s33, {24-lg}\ns_lshr_b32 s32, s2, {lg}\ns_lshl_b32 s32, s32, 3\ns_add_u32 s32, s32, s3\ns_lshl_b32 s32, s32, 12\ns_add_u32 s33, s33, s32")
    a("s_lshl_b32 s32, s35, 24\ns_mov_b32 s26, 0x1000000\ns_mov_b32 s27, 0x20000")
    a("s_waitcnt lgkmcnt(0)")
    a("s_add_u32 s24, s6, s32\ns_addc_u32 s25, s7, 0")
    late_init = [
                 "s_lshl_b32 s28, s35, 24\ns_add_u32 s28, s8, s28\ns_addc_u32 s29, s9, 0\ns_mov_b32 s30, 0x1000000\ns_mov_b32 s31, 0x20000",
                 "s_mov_b32 s6, 0x05040100\ns_mov_b32 s7, 0x07060302",
                 "v_lshrrev_b32 v3, 4, v0\nv_lshlrev_b32 v3, 9, v3\nv_and_b32 v4, 15, v0\nv_lshl_add_u32 v3, v4, 4, v3",
                 "s_lshl_b32 s9, s3, 6\nv_add_u32 v1, s9, v0",
                 "\n".join(f"v_mov_b32 v{QOP+i}, 0" for i in range(16)),
                 "v_bfe_u32 v5, v0, 3, 1\nv_lshlrev_b32 v5, 9, v5\nv_lshl_add_u32 v5, v6, 4, v5\nv_mov_b32 v4, 0xff800000"]
    kslots = [60 + 4*i for i in range(27)]
    vslots = [104 + 4*i for i in range(16)]
    free = list(kslots)
    reg = {}
    cur = [None]
    def issue(n):
        if n < 64:
            G, lo, srd, vo = n >> 2, (n & 3) * 128, "s[24:27]", "v2"
            cand = [r for r in free if (r < 104 or n < 48)]
            cand.sort(key=lambda r: (r < 104) if n < 48 else r)
        else:
            m = n - 64
            T, hf, e = m >> 4, (m >> 3) & 1, m & 7
            G, lo, srd, vo = 4*T + (e >> 1), (e & 1) * 2048 + hf * 256, "s[28:31]", "v3"
            cand = [r for r in free if r == vslots[m % 16]]
        if not cand: return False
        r = cand[0]; free.remove(r); reg[n] = r
        if G == 0 and n < 64: so = "s33"
        else:
            so = "s32"
            if cur[0] != G:
                a(f"s_add_u32 s32, s33, {G*GS}"); cur[0] = G
        if n >= burst: a(f"s_waitcnt vmcnt({(Wpre if (Wpre and n < npre) else W)-1})")
        a(f"buffer_load_dwordx4 v[{r}:{r+3}], {vo}, {srd}, {so} offen offset:{lo} {pol}")
        return True
    chunks = []
    def cM(g):
        def f():
            for t in range(4):
                r = reg[4*g + t]
                a(f"v_mfma_f32_32x32x16_bf16 v[{D}:{D+15}], v[{r}:{r+3}], v[{QOP+4*t}:{QOP+4*t+3}], {'0' if t == 0 else 'v[%d:%d]' % (D, D+15)}")
                free.append(r)
        return f
    def cE(g):
        def f():
            a("s_nop 11")
            for k in (1, 2, 3):
                for q in range(4):
                    a(f"v_add_f32_dpp v{XT+q}, v{D+4*q+k}, v{D+4*q if k == 1 else XT+q} quad_perm:[{k},{k},{k},{k}] {DPPF}")
            a(f"s_nop 1\nv_permlane32_swap_b32 v{XT}, v{XT+1}\nv_permlane32_swap_b32 v{XT+2}, v{XT+3}\ns_nop 0")
            a(f"v_add_f32_dpp v{XT}, v{XT+1}, v{XT} row_shl:4 {DPPF} bound_ctrl:0")
            a(f"v_add_f32_dpp v{XT+2}, v{XT+3}, v{XT+2} row_shl:4 {DPPF} bound_ctrl:0")
            a(f"v_max3_f32 v4, v{XT}, v{XT+2}, v4")
            a(f"v_cvt_pk_bf16_f32 v{SP+g}, v{XT}, v{XT+2}")
        return f
    for g in range(16):
        chunks.append((4*g + 3, cM(g))); chunks.append((0, cE(g)))
    def cS0():
        stamp(4)
        rowreduce(4, 5, "v_max_f32")
        a("v_cvt_pk_bf16_f32 v4, v4, v4\nv_and_b32 v4, 0xffff0000, v4")
        a(f"s_mov_b32 s9, {CEXP}\nv_mul_f32 v4, s9, v4\nv_mov_b32 v5, 0")
    def cS(i0, i1):
        def f():
            for i in range(i0, i1):
                t0, t1 = PT + 2*(i & 3), PT + 2*(i & 3) + 1
                a(f"v_lshlrev_b32 v{t0}, 16, v{SP+i}\nv_and_b32 v{t1}, 0xffff0000, v{SP+i}")
                a(f"v_fma_f32 v{t0}, v{t0}, s9, -v4\nv_fma_f32 v{t1}, v{t1}, s9, -v4")
                a(f"v_exp_f32 v{t0}, v{t0}\nv_exp_f32 v{t1}, v{t1}")
                a(f"v_add_f32 v5, v5, v{t0}\nv_add_f32 v5, v5, v{t1}")
                a(f"v_cvt_pk_bf16_f32 v{SP+i}, v{t0}, v{t1}")
        return f
    def cS1():
        rowreduce(5, 6)
        a("s_lshl_b32 s9, s3, 2\nv_lshl_add_u32 v6, v0, 2, s9")
        a("s_mov_b64 exec, 0x101")
        a(f"ds_write_b32 v6, v4 offset:{L_M}\nds_write_b32 v6, v5 offset:{L_L}")
        a(f"s_mov_b64 exec, 1\nv_mov_b32 v6, 1\nv_mov_b32 v5, 0\nds_add_u32 v5, v6 offset:{L_C}")
        a("s_mov_b64 exec, -1")
    chunks.append((0, cS0))
    for i in range(0, 16, 4): chunks.append((0, cS(i, i+4)))
    chunks.append((0, cS1))
    def mf(ht, d, t):
        T, hf = ht >> 1, ht & 1
        c = ACC + 4*(8*hf + d)
        a(f"v_mfma_f32_16x16x32_bf16 v[{c}:{c+3}], v[{SP+4*T}:{SP+4*T+3}], v[{t}:{t+3}], {'0' if T == 0 else 'v[%d:%d]' % (c, c+3)}")
    def cP(ht, i):
        def f():
            n0 = 64 + 8*ht
            for d in (2*i, 2*i+1):
                t = PT + 4*(d & 3)
                for u in range(4):
                    a(f"v_perm_b32 v{t+u}, v{reg[n0+2*u+1] + (d>>1)}, v{reg[n0+2*u] + (d>>1)}, {'s7' if d & 1 else 's6'}")
            mf(ht, 2*i, PT + 4*((2*i) & 3)); a("s_nop 0"); mf(ht, 2*i+1, PT + 4*((2*i+1) & 3))
            if i == 3:
                for e in range(8): free.append(reg[n0+e])
        return f
    nht = 7 if lastpair else 8
    for ht in range(nht):
        for i in range(4): chunks.append((64 + 8*ht + 7, cP(ht, i)))
    def cF():
        a(f"s_lshl_b32 s9, s3, 3\nv_lshrrev_b32 v5, 5, v0\nv_lshl_add_u32 v4, v5, 2, s9\ns_mov_b32 s10, {spin}")
        a("L_fspin:")
        a(f"ds_read_b32 v6, v4 offset:{L_F}\ns_sub_u32 s10, s10, 1\ns_cbranch_scc1 L_fok")
        a("s_waitcnt lgkmcnt(0)\nv_cmp_gt_i32 vcc, 0, v6\ns_cbranch_vccnz L_fspin")
        a("L_fok:")
        if endprio: a("s_setprio 3")
        a(f"v_mov_b32 v4, 0\nds_read_b32 v4, v4 offset:{L_G}\ns_waitcnt lgkmcnt(0)\nv_readfirstlane_b32 s34, v4")
        a("s_lshl_b32 s9, s3, 11\nv_and_b32 v4, 15, v0\nv_lshlrev_b32 v4, 5, v4\nv_lshl_add_u32 v5, v5, 10, v4\nv_add_u32 v5, s9, v5")
        a(f"s_lshl_b32 s9, s45, 12\ns_add_u32 s9, s9, {WS_H1}\nv_lshl_add_u32 v2, v1, 3, s9\nv_lshlrev_b32 v1, 2, v1\ns_waitcnt lgkmcnt(0)")
    ci = 0
    for n in range(128):
        if n == npre:
            stamp(2)
            a("s_barrier")
            a("s_mov_b32 exec_lo, 0x0000ffff\ns_mov_b32 exec_hi, 0xffff0000")
            for t in range(4): a(f"ds_read_b128 v[{QOP+4*t}:{QOP+4*t+3}], v5 offset:{L_Q+128*t}")
            a("s_mov_b64 exec, -1\ns_waitcnt lgkmcnt(0)")
            stamp(3)
        while not issue(n):
            assert n >= npre and chunks[ci][0] <= n - 1 - W, (n, ci)
            chunks[ci][1](); ci += 1
        if prog and n in (3, 4, 6, 10): stamp({3: 11, 4: 12, 6: 13, 10: 14}[n])
        if prog and n % 8 == 7: stamp(16 + n // 8)
        if n >= (burst - 1 if not prog else 12) and late_init: a(late_init.pop(0))
        if n == fslot: cF()
        if n == qt:
            a(f"s_mov_b64 exec, 1\nv_mov_b32 v{XT}, 0\nv_mov_b32 v{XT+1}, 1\nds_write_b32 v{XT}, v{XT+1} offset:{L_T}\ns_mov_b64 exec, -1")
        for ph, slot in ((1, mt), (2, wt)):
            if n == slot:
                a(f"s_mov_b64 exec, 1\nv_mov_b32 v{PT+14}, 0\nv_mov_b32 v{PT+15}, {ph}\nds_max_u32 v{PT+14}, v{PT+15} offset:{L_P}\ns_mov_b64 exec, -1")
        if n >= npre and ci < len(chunks) and chunks[ci][0] <= n - W:
            chunks[ci][1](); ci += 1
    assert not late_init
    while ci < len(chunks):
        need = chunks[ci][0]
        if need > 127 - W: a(f"s_waitcnt vmcnt({127 - need})")
        chunks[ci][1](); ci += 1
    if lastpair:
        BS = reg[112]
        assert all(reg[112+e] == BS + 4*e for e in range(8))
        for u in range(4):
            need = 120 + 2*u + 1
            if need > 127 - W: a(f"s_waitcnt vmcnt({127 - need})")
            if u == 3: stamp(5)
            for d in range(8):
                a(f"v_perm_b32 v{BS+4*d+u}, v{reg[120+2*u+1] + (d>>1)}, v{reg[120+2*u] + (d>>1)}, {'s7' if d & 1 else 's6'}")
                if u == 3 and d >= 2: mf(7, d-2, BS+4*(d-2))
            if u == 2:
                for i in range(8): a(f"v_mul_f32 v{PT+i}, v6, v{ACC+4*i}")
                a("s_mov_b32 exec_lo, 0x0000ffff\ns_mov_b32 exec_hi, 0x0000ffff")
                for i in range(2): a(f"ds_write_b128 v5, v[{PT+4*i}:{PT+4*i+3}] offset:{L_O + i*16}")
                a("s_mov_b64 exec, -1")
        mf(7, 6, BS+24); a("s_nop 0"); mf(7, 7, BS+28)
        a("s_mov_b32 exec_lo, 0x0000ffff\ns_mov_b32 exec_hi, 0x0000ffff")
        for i in range(8, 12): a(f"v_mul_f32 v{PT+i}, v6, v{ACC+4*i}")
        a(f"ds_write_b128 v5, v[{PT+8}:{PT+11}] offset:{L_O + 512}")
        a("s_nop 0")
        for i in range(12, 16): a(f"v_mul_f32 v{PT+i}, v6, v{ACC+4*i}")
        a(f"ds_write_b128 v5, v[{PT+12}:{PT+15}] offset:{L_O + 512 + 16}")
        a("s_mov_b64 exec, -1")
    else:
        stamp(5)
        a("s_nop 7")
        for i in range(16): a(f"v_mul_f32 v{PT+i}, v6, v{ACC+4*i}")
        a("s_mov_b32 exec_lo, 0x0000ffff\ns_mov_b32 exec_hi, 0x0000ffff")
        for i in range(4): a(f"ds_write_b128 v5, v[{PT+4*i}:{PT+4*i+3}] offset:{L_O + (i>>1)*512 + (i&1)*16}")
        a("s_mov_b64 exec, -1")
    a(f"v_mov_b32 v9, s34\nv_add_u32 v3, {WS_NEAR}, v2")
    a("s_waitcnt lgkmcnt(0)\ns_barrier")
    for j in range(4):
        a(f"ds_read2st64_b32 v[{24+2*j}:{25+2*j}], v1 offset0:{L_O//256 + 16*j} offset1:{L_O//256 + 16*j + 8}")
    a("s_waitcnt lgkmcnt(2)\nv_add_f32 v24, v24, v25\nv_add_f32 v26, v26, v27\nv_add_f32 v24, v24, v26")
    a("s_waitcnt lgkmcnt(0)\nv_add_f32 v28, v28, v29\nv_add_f32 v30, v30, v31\nv_add_f32 v28, v28, v30\nv_add_f32 v8, v24, v28")
    if dual1: a("global_store_dwordx2 v3, v[8:9], s[22:23]")
    a("global_store_dwordx2 v2, v[8:9], s[22:23] sc1")
    stamp(6)
    a("s_branch L_fin")
    a("L_helper:")
    a(f"s_setprio {hprio}")
    a("s_mul_i32 s44, s35, 14\ns_add_u32 s44, s44, s2")
    a("s_sub_u32 s3, s3, 8")
    a("s_waitcnt lgkmcnt(0)")
    a("s_load_dword s34, s[22:23], 0")
    a("s_mov_b32 s6, 0x05040100\ns_mov_b32 s7, 0x07060302")
    if noq: a("s_branch L_hinit")
    a("s_cmp_ge_u32 s3, 2\ns_cbranch_scc1 L_hinit")
    a("s_cmp_eq_u32 s3, 0\ns_cbranch_scc1 L_gemv")
    a(f"s_cmp_ge_u32 s2, {0 if noffn else 14}\ns_cbranch_scc1 L_hinit")
    a("L_gemv:")
    a(f"v_mov_b32 v4, 0\nds_write_b32 v4, v4 offset:{L_T}")
    a("s_lshl_b32 s9, s35, 3\ns_and_b32 s50, s2, 7\ns_add_u32 s9, s9, s50")
    a("s_lshr_b32 s50, s2, 3\ns_lshr_b32 s46, s44, 2\ns_and_b32 s47, s44, 3")
    a(f"s_lshl_b32 s48, s45, 9\ns_add_u32 s48, s48, {WS_QREC}\ns_lshl_b32 s49, s44, 9\ns_add_u32 s49, s49, {WS_FREC}")
    a("s_mov_b32 s38, 1605632\ns_mov_b32 s41, 3584")
    a("s_cmp_eq_u32 s3, 0")
    a("s_cselect_b32 s36, s10, s16\ns_cselect_b32 s37, s11, s17\ns_cselect_b32 s38, 3670016, s38\ns_mov_b32 s39, 0x20000")
    a("s_cselect_b32 s41, 8192, s41\ns_cselect_b32 s42, s9, s46\ns_cselect_b32 s50, s50, s47\ns_cselect_b32 s48, s48, s49")
    a("v_lshrrev_b32 v4, 1, v0\nv_mul_u32_u24 v5, 28, v4")
    a("global_load_dwordx4 v[8:11], v5, s[4:5]\nglobal_load_dwordx3 v[12:14], v5, s[4:5] offset:16")
    a("v_lshrrev_b32 v4, 3, v0\ns_mul_i32 s46, s50, 224\nv_mul_u32_u24 v5, 28, v4\nv_add_u32 v5, s46, v5")
    a("global_load_dwordx4 v[56:59], v5, s[4:5]\nglobal_load_dwordx3 v[60:62], v5, s[4:5] offset:16")
    a("s_mul_i32 s43, s41, 14\nv_mul_lo_u32 v5, v4, s43\nv_lshl_add_u32 v5, v6, 4, v5")
    a("s_lshl_b32 s42, s42, 7\ns_mul_i32 s46, s50, 112\ns_mul_i32 s46, s46, s41\ns_add_u32 s42, s42, s46")
    WB = 96
    for i in range(14):
        a(f"buffer_load_dwordx4 v[{WB+4*i}:{WB+4*i+3}], v5, s[36:39], s42 offen {wpol}")
        if i < 13: a("s_add_u32 s42, s42, s41")
    a("s_waitcnt vmcnt(16)")
    if prog: stamp(11)
    XF = 16
    PAR = ("quad_perm:[2,3,0,1]", "row_ror:4", "row_ror:8")
    for u in range(7):
        a(f"v_lshlrev_b32 v{XF+2*u}, 16, v{8+u}\nv_and_b32 v{XF+2*u+1}, 0xffff0000, v{8+u}")
    a(f"v_add_f32 v30, v{XF}, v{XF+1}")
    for i in range(2, 14): a(f"v_add_f32 v30, v30, v{XF+i}")
    dppred(30, PAR); rowreduce(30, 31)
    a("v_mul_f32 v30, 0x3b124925, v30")
    a(f"v_sub_f32 v32, v{XF}, v30\nv_mul_f32 v33, v32, v32")
    for i in range(1, 14): a(f"v_sub_f32 v32, v{XF+i}, v30\nv_fmac_f32 v33, v32, v32")
    dppred(33, PAR); rowreduce(33, 31)
    a("v_mul_f32 v33, 0x3b124925, v33")
    a("v_cvt_pk_bf16_f32 v30, v30, v33")
    a("v_and_b32 v33, 0xffff0000, v30\nv_lshlrev_b32 v30, 16, v30")
    a("v_add_f32 v33, 0x3727c5ac, v33")
    a("v_cvt_pk_bf16_f32 v33, v33, v33\nv_and_b32 v33, 0xffff0000, v33")
    a("v_sqrt_f32 v33, v33\ns_nop 0")
    a("v_cvt_pk_bf16_f32 v33, v33, v33\nv_and_b32 v33, 0xffff0000, v33")
    a("v_rcp_f32 v33, v33")
    a("s_waitcnt vmcnt(14)")
    for u in range(7):
        a(f"v_lshlrev_b32 v16, 16, v{56+u}\nv_and_b32 v17, 0xffff0000, v{56+u}")
        a(f"v_sub_f32 v16, v16, v30\nv_sub_f32 v17, v17, v30")
        a(f"v_cvt_pk_bf16_f32 v17, v16, v17")
        a(f"v_lshlrev_b32 v16, 16, v17\nv_and_b32 v17, 0xffff0000, v17")
        a(f"v_mul_f32 v16, v16, v33\nv_mul_f32 v17, v17, v33")
        a(f"v_cvt_pk_bf16_f32 v{8+u}, v16, v17")
    GA = 40
    for u in range(7):
        a(f"s_waitcnt vmcnt({12-2*u})")
        if prog and u in (0, 3, 6): stamp({0: 12, 3: 13, 6: 14}[u])
        for w in range(4):
            r0, r1 = WB + 8*u + w, WB + 8*u + 4 + w
            a(f"v_perm_b32 v{48+2*w}, v{r1}, v{r0}, s6\nv_perm_b32 v{49+2*w}, v{r1}, v{r0}, s7")
        for c in range(8):
            a(f"v_dot2_f32_bf16 v{GA+c}, v{48+c}, v{8+u}, {'0' if u == 0 else 'v%d' % (GA+c)}")
    a("s_waitcnt lgkmcnt(0)\ns_add_u32 s51, s34, 1\ns_nop 0")
    for c in range(4): a(f"v_permlane32_swap_b32 v{GA+c}, v{GA+c+4}")
    for c in range(4): a(f"v_add_f32 v{GA+c}, v{GA+c}, v{GA+c+4}")
    a("v_lshrrev_b32 v4, 4, v0")
    for c in range(2): a(f"v_permlane16_swap_b32 v{GA+c}, v{GA+c+2}")
    for c in range(2): a(f"v_add_f32 v{GA+c}, v{GA+c}, v{GA+c+2}")
    a("v_lshl_add_u32 v4, v6, 2, v4")
    a(f"v_add_f32_dpp v{GA}, v{GA}, v{GA} row_ror:8 {DPPF}")
    a(f"v_add_f32_dpp v{GA+2}, v{GA+1}, v{GA+1} row_ror:8 {DPPF}")
    a(f"v_mov_b32 v{GA+1}, s51\nv_mov_b32 v{GA+3}, s51")
    a("v_lshl_add_u32 v4, v4, 4, s48")
    a("s_mov_b32 exec_lo, 0x00ff00ff\ns_mov_b32 exec_hi, 0x00ff00ff")
    a(f"global_store_dwordx4 v4, v[{GA}:{GA+3}], s[22:23] sc1")
    a("s_mov_b64 exec, -1")
    stamp(1)
    a("s_cmp_eq_u32 s3, 0\ns_cbranch_scc0 L_hinit")
    a(f"s_lshl_b32 s9, s35, 14\ns_add_u32 s9, s9, {WS_QREC}")
    a("v_lshl_add_u32 v8, v0, 4, s9\nv_add_u32 v9, 4096, v8\nv_add_u32 v10, 8192, v8\nv_add_u32 v11, 12288, v8")
    a("s_sub_u32 s50, s44, 18\ns_and_b32 s46, s50, 3\ns_andn2_b32 s50, s50, 3")
    a(f"s_lshl_b32 s50, s50, 9\ns_lshl_b32 s46, s46, 7\ns_add_u32 s50, s50, s46\ns_add_u32 s50, s50, {WS_FREC}")
    a("s_cmp_ge_u32 s2, 18\ns_cselect_b32 s50, s50, s9")
    a("v_lshrrev_b32 v12, 4, v0\nv_lshlrev_b32 v12, 9, v12\nv_lshl_add_u32 v12, v6, 4, v12\nv_add_u32 v12, s50, v12")
    a(f"s_mov_b32 s9, {spin}")
    lds_wait(L_T, "v_cmp_ne_u32", 1, "L_qw", bound=2000)
    a("s_branch L_gpoll1")
    if nogather: a("s_branch L_hinit")
    a("L_gpoll:")
    a(f"s_sleep {gsleep or 16}\nL_gpoll1:")
    GB = 96
    for rq in range(4):
        for j in range(4):
            r = GB + 16*j + 4*rq
            a(f"global_load_dwordx4 v[{r}:{r+3}], v{8+rq}, s[22:23] offset:{1024*j} sc1")
    a(f"global_load_dwordx4 v[{GB+64}:{GB+67}], v12, s[22:23] sc1")
    a("s_sub_u32 s9, s9, 1\ns_cbranch_scc1 L_gok")
    a("v_mov_b32 v16, 0")
    for i in range(17):
        rq, j = i >> 2, i & 3
        r = GB + 16*j + 4*rq if i < 16 else GB + 64
        a(f"s_waitcnt vmcnt({16-i})")
        a(f"v_xor_b32 v17, s51, v{r+1}\nv_xor_b32 v18, s51, v{r+3}\nv_or3_b32 v16, v16, v17, v18")
    a("v_cmp_ne_u32 vcc, 0, v16\ns_cbranch_vccnz L_gpoll")
    a("L_gok:")
    a("s_waitcnt vmcnt(0)")
    a("v_lshlrev_b32 v4, 2, v0")
    for j in range(4):
        r = GB + 16*j
        a(f"v_add_f32 v{r}, v{r}, v{r+4}\nv_add_f32 v{r+2}, v{r+2}, v{r+6}\nv_add_f32 v{r+8}, v{r+8}, v{r+12}\nv_add_f32 v{r+10}, v{r+10}, v{r+14}")
        a(f"v_add_f32 v{r}, v{r}, v{r+8}\nv_add_f32 v{r+2}, v{r+2}, v{r+10}")
        a(f"v_cvt_pk_bf16_f32 v{r}, v{r}, v{r+2}")
        a(f"ds_write_b32 v4, v{r} offset:{L_Q + 256*j}")
    rowreduce(GB+64, 16)
    rowreduce(GB+66, 16)
    a(f"v_max_f32 v{GB+64}, 0, v{GB+64}\nv_max_f32 v{GB+66}, 0, v{GB+66}\nv_cvt_pk_bf16_f32 v16, v{GB+64}, v{GB+66}")
    a("s_mov_b64 exec, 0xff")
    a(f"ds_write_b32 v4, v16 offset:{L_H}")
    a("s_mov_b64 exec, -1")
    a("s_branch L_hbar")
    a("L_hinit:")
    a("v_lshlrev_b32 v4, 2, v0\nv_cmp_gt_u32 vcc, 16, v0\nv_mov_b32 v5, 0\nv_mov_b32 v8, -1\nv_cndmask_b32 v5, v5, v8, vcc")
    a(f"s_mov_b64 exec, 0x3ffff\nds_write_b32 v4, v5 offset:{L_F}\ns_mov_b64 exec, -1")
    a("L_hbar:")
    a("s_waitcnt lgkmcnt(0)\ns_add_u32 s34, s34, 1")
    a(f"v_mov_b32 v4, 0\nv_mov_b32 v5, s34\nds_write_b32 v4, v5 offset:{L_G}\ns_waitcnt lgkmcnt(0)")
    stamp(2)
    a("s_barrier")
    a("s_sub_u32 s9, s44, 18\ns_mul_i32 s9, s9, 14336")
    a("s_cmp_ge_u32 s2, 18\ns_cselect_b32 s9, s9, 0\ns_cselect_b32 s42, 14336, 0")
    a("s_add_u32 s40, s18, s9\ns_addc_u32 s41, s19, 0\ns_mov_b32 s43, 0x20000")
    a("s_mul_i32 s9, s45, 14336")
    a("s_add_u32 s36, s12, s9\ns_addc_u32 s37, s13, 0\ns_mov_b32 s38, 14336\ns_mov_b32 s39, 0x20000")
    a("s_lshl_b32 s9, s3, 6\nv_add_u32 v1, s9, v0")
    a("v_lshlrev_b32 v2, 2, v1\nv_mov_b32 v3, 0x100000\nv_cmp_gt_u32 vcc, 224, v1\ns_mov_b64 s[52:53], vcc\ns_nop 0\nv_cndmask_b32 v2, v3, v2, vcc")
    WO, W2, WP = 96, 112, 128
    def wloads(base, srd):
        for d in range(16):
            if d % 4 == 0: a(f"s_mov_b32 s9, {896*d}")
            a(f"s_waitcnt vmcnt({wpace-1})")
            a(f"buffer_load_dword v{base+d}, v2, {srd}, s9 offen offset:{896*(d%4)} {wpol}")
    def weights():
        if not noweights:
            a("s_cmp_ge_u32 s2, 18\ns_cbranch_scc0 L_now2")
            wloads(W2, "s[40:43]")
            a("L_now2:")
            wloads(WO, "s[36:39]")
        a(f"v_mov_b32 v4, 0\nds_read_b128 v[8:11], v4 offset:{L_H}\nds_read_b128 v[12:15], v4 offset:{L_H+16}")
        a("v_mov_b32 v16, 0\nv_mov_b32 v18, 0\nv_mov_b32 v17, s34\nv_mov_b32 v19, s34")
        a("s_waitcnt vmcnt(0) lgkmcnt(0)")
        a("s_cmp_ge_u32 s2, 18\ns_cbranch_scc0 L_noffn")
        for u in range(8):
            a(f"v_perm_b32 v{WP+u}, v{W2+2*u+1}, v{W2+2*u}, s6\nv_perm_b32 v{WP+8+u}, v{W2+2*u+1}, v{W2+2*u}, s7")
        for u in range(8):
            a(f"v_dot2_f32_bf16 v16, v{WP+u}, v{8+u}, v16\nv_dot2_f32_bf16 v18, v{WP+8+u}, v{8+u}, v18")
        a("L_noffn:")
        for u in range(8):
            a(f"v_perm_b32 v{WP+u}, v{WO+2*u+1}, v{WO+2*u}, s6\nv_perm_b32 v{WP+8+u}, v{WO+2*u+1}, v{WO+2*u}, s7")
    if not wt: weights()
    stamp(3)
    a("s_cmp_eq_u32 s3, 1\ns_cbranch_scc0 L_noml")
    lds_wait(L_C, "v_cmp_gt_u32", 8, "L_cw")
    a("v_lshrrev_b32 v4, 5, v0\nv_lshlrev_b32 v5, 5, v4\nv_lshl_add_u32 v5, v6, 2, v5")
    a(f"ds_read_b32 v20, v5 offset:{L_M}\nds_read_b32 v21, v5 offset:{L_L}")
    a(f"s_lshl_b32 s9, s45, 5\ns_add_u32 s9, s9, {WS_ML}\nv_lshl_add_u32 v28, v4, 4, s9")
    a(f"s_lshl_b32 s9, s35, 10\ns_add_u32 s9, s9, {WS_ML}\nv_and_b32 v29, 31, v0\nv_lshlrev_b32 v29, 5, v29\nv_lshl_add_u32 v29, v4, 4, v29\nv_add_u32 v29, s9, v29")
    a("s_getreg_b32 s11, hwreg(HW_REG_XCC_ID)\ns_and_b32 s11, s11, 15\ns_xor_b32 s9, s11, s34")
    a("v_mov_b32 v25, s34\nv_mov_b32 v27, s9")
    a("s_waitcnt lgkmcnt(0)\nv_mov_b32 v24, v20")
    R8 = ("quad_perm:[1,0,3,2]", "quad_perm:[2,3,0,1]", "row_half_mirror")
    dppred(24, R8, "v_max_f32")
    a("v_sub_f32 v26, v20, v24\nv_exp_f32 v26, v26\ns_nop 0\nv_mul_f32 v26, v26, v21")
    dppred(26, R8)
    if noml == 1: a("s_branch L_mlk")
    a("s_mov_b32 exec_lo, 1\ns_mov_b32 exec_hi, 1\nglobal_store_dwordx4 v28, v[24:27], s[22:23] sc1\ns_mov_b64 exec, -1")
    a(f"s_mov_b32 s10, {spin}")
    if noml == 2: a("s_branch L_mlk")
    lds_wait(L_P, "v_cmp_gt_u32", 1, "L_mw")
    a(f"s_mov_b32 s10, {spin}\ns_branch L_mlp1")
    a(f"L_mlp:\ns_sleep {mlsleep}\nL_mlp1:\nglobal_load_dwordx4 v[32:35], v29, s[22:23] sc1\ns_sub_u32 s10, s10, 1\ns_cbranch_scc1 L_mlk")
    a("s_waitcnt vmcnt(0)\nv_xor_b32 v36, s34, v33\nv_xor_b32 v37, s34, v35\nv_and_or_b32 v36, v37, -16, v36\nv_cmp_ne_u32 vcc, 0, v36\ns_cbranch_vccnz L_mlp")
    a("L_mlk:\ns_waitcnt vmcnt(0)\nv_mov_b32 v24, v32")
    a(f"v_cmp_eq_u32 vcc, s9, v35\nv_mov_b32 v36, 0\ns_nop 0\nv_mov_b32 v37, vcc_lo\nds_write_b32 v36, v37 offset:{L_X}")
    R16 = ("quad_perm:[1,0,3,2]", "quad_perm:[2,3,0,1]", "row_ror:4", "row_ror:8")
    dppred(24, R16, "v_max_f32")
    a("v_mov_b32 v36, v24\ns_nop 1\nv_permlane16_swap_b32 v24, v36\nv_max_f32 v24, v24, v36")
    a("v_sub_f32 v26, v32, v24\nv_exp_f32 v26, v26\ns_nop 0\nv_mul_f32 v26, v26, v34")
    dppred(26, R16)
    a("v_mov_b32 v36, v26\ns_nop 1\nv_permlane16_swap_b32 v26, v36\nv_add_f32 v26, v26, v36")
    a("v_sub_f32 v20, v20, v24\nv_exp_f32 v20, v20\nv_rcp_f32 v26, v26\ns_nop 0\nv_mul_f32 v20, v20, v26\nv_and_b32 v20, 0x7fffffff, v20")
    a("v_lshlrev_b32 v5, 2, v4\nv_lshl_add_u32 v5, v6, 3, v5")
    a(f"s_mov_b32 exec_lo, 0xff\ns_mov_b32 exec_hi, 0xff\nds_write_b32 v5, v20 offset:{L_F}\ns_mov_b64 exec, -1")
    stamp(4)
    a("L_noml:")
    if wt:
        lds_wait(L_P, "v_cmp_gt_u32", 2, "L_ww")
        weights()
    a(f"s_lshl_b32 s9, s35, 17\ns_lshl_b32 s10, s2, 7\ns_add_u32 s9, s9, s10\ns_add_u32 s9, s9, {WS_H1}")
    a("v_lshrrev_b32 v40, 3, v0\nv_lshlrev_b32 v40, 12, v40\nv_lshl_add_u32 v40, v6, 4, v40\nv_add_u32 v40, s9, v40")
    for i in range(1, 4): a(f"v_add_u32 v{40+i}, {32768*i}, v40")
    a(f"s_lshl_b32 s9, s45, 12\ns_add_u32 s9, s9, {WS_H2}\nv_lshl_add_u32 v44, v1, 4, s9")
    a("s_mul_i32 s46, s35, 28\ns_add_u32 s46, s46, s2\ns_min_u32 s46, s46, 223\ns_lshl_b32 s47, s46, 2\ns_load_dword s48, s[4:5], s47")
    a(f"s_lshl_b32 s9, s46, 4\ns_add_u32 s9, s9, {WS_H2}\nv_lshl_add_u32 v48, v0, 12, s9")
    for i in range(1, 4): a(f"v_add_u32 v{48+i}, {i*64*4096}, v48")
    lds_wait(L_F, "v_cmp_gt_i32", 0, "L_xw")
    a(f"ds_read_b32 v39, v38 offset:{L_X}\nv_lshrrev_b32 v52, 3, v0\nv_add_u32 v45, {WS_NEAR}, v44\ns_waitcnt lgkmcnt(0)")
    if dual1:
        a("v_lshrrev_b32 v53, v52, v39")
        for i in range(4):
            a(f"v_bfe_u32 v54, v53, {8*i}, 1\nv_lshl_add_u32 v{40+i}, v54, 23, v{40+i}")
    if dual2:
        a("v_and_b32 v53, 31, v0\nv_lshrrev_b32 v53, v53, v39\nv_and_b32 v53, 1, v53\nv_lshrrev_b32 v54, 5, v0")
        for i in range(4):
            a(f"v_add_u32 v55, {2*i}, v54\nv_cmp_eq_u32 vcc, s35, v55\nv_mov_b32 v56, 0\ns_nop 0\nv_cndmask_b32 v55, v56, v53, vcc\nv_lshl_add_u32 v{48+i}, v55, 23, v{48+i}")
    if pre1 or pre2 or pret:
        a("s_cmp_eq_u32 s3, 0\ns_cbranch_scc0 L_nopre")
        if pre1:
            for i in range(4): a(f"global_load_dwordx4 v[{24+4*i}:{27+4*i}], v{40+i}, s[22:23] sc1\ns_waitcnt vmcnt(0)")
        if pre2:
            for i in range(4): a(f"global_load_dwordx4 v[{24+4*i}:{27+4*i}], v{48+i}, s[22:23] sc1\ns_waitcnt vmcnt(0)")
        if pret:
            a(f"s_lshl_b32 s9, s45, 12\ns_add_u32 s9, s9, {WS_H2 + 3584}\nv_mov_b32 v24, s9\nv_add_u32 v25, {WS_NEAR}, v24")
            a(f"v_mov_b32 v26, {WS_H1 - 128}\nv_add_u32 v27, {WS_NEAR}, v26")
            for i in range(4): a(f"global_load_dword v{28+i}, v{24+i}, s[22:23] sc1")
            a("v_mov_b32 v24, 0\nglobal_load_dword v32, v24, s[20:21]\ns_waitcnt vmcnt(0)")
        a("L_nopre:")
    def poll(lab, areg, slp):
        for i in range(4): a(f"s_mov_b64 s[{56+2*i}:{57+2*i}], -1")
        a(f"s_mov_b32 s10, {spin}")
        def body():
            if slp: a(f"s_branch {lab}e\n{lab}:\ns_sleep {slp}\n{lab}e:")
            else: a(f"{lab}:")
            for i in range(4):
                a(f"s_mov_b64 exec, s[{56+2*i}:{57+2*i}]\ns_cbranch_execz {lab}s{i}")
                a(f"global_load_dwordx4 v[{24+4*i}:{27+4*i}], v{areg+i}, s[22:23] sc1\n{lab}s{i}:")
            a(f"s_mov_b64 exec, -1\ns_sub_u32 s10, s10, 1\ns_cbranch_scc1 {lab}k\ns_waitcnt vmcnt(0)")
            for i in range(4):
                a(f"v_cmp_ne_u32 vcc, s34, v{25+4*i}\nv_cmp_ne_u32 s[{56+2*i}:{57+2*i}], s34, v{27+4*i}\ns_or_b64 s[{56+2*i}:{57+2*i}], s[{56+2*i}:{57+2*i}], vcc")
            a("s_or_b64 s[64:65], s[56:57], s[58:59]\ns_or_b64 s[66:67], s[60:61], s[62:63]\ns_or_b64 s[64:65], s[64:65], s[66:67]")
            a(f"s_cbranch_scc1 {lab}\n{lab}k:\ns_waitcnt vmcnt(0)")
            a("v_add_f32 v24, v24, v28\nv_add_f32 v26, v26, v30\nv_add_f32 v32, v32, v36\nv_add_f32 v34, v34, v38\nv_add_f32 v24, v24, v32\nv_add_f32 v26, v26, v34")
        return body
    if endprio: a("s_setprio 0")
    b1 = poll("L_h1", 40, h1sleep)
    a("s_waitcnt lgkmcnt(0)")
    stamp(5)
    a("s_barrier")
    if notail: a("s_branch L_fin")
    if onepoll: a("s_cmp_eq_u32 s3, 0\ns_cbranch_scc0 L_fin")
    if h1pre: a(f"s_sleep {h1pre}")
    b1()
    stamp(7)
    a("s_nop 1\nv_permlane32_swap_b32 v24, v26\nv_add_f32 v24, v24, v26")
    a(f"s_nop 1\nv_add_f32_dpp v24, v24, v24 row_ror:8 {DPPF}")
    a("v_mov_b32 v25, v24\ns_nop 1\nv_permlane16_swap_b32 v24, v25\nv_add_f32 v24, v24, v25")
    a("v_mov_b32 v25, v24\ns_nop 1\nv_permlane32_swap_b32 v24, v25")
    a("v_cvt_pk_bf16_f32 v24, v24, v25\ns_nop 0")
    for u in range(8): a(f"v_readlane_b32 s{68+u}, v24, {u}")
    a("s_mov_b64 exec, s[52:53]")
    for u in range(8):
        a(f"v_dot2_f32_bf16 v16, v{WP+u}, s{68+u}, v16\nv_dot2_f32_bf16 v18, v{WP+8+u}, s{68+u}, v18")
    a("s_cmp_eq_u32 s3, 0\ns_cselect_b32 s9, s2, 99\ns_cmp_lt_u32 s9, 28")
    if not nost2: a("global_store_dwordx4 v44, v[16:19], s[22:23] sc1")
    if dual2: a("global_store_dwordx4 v45, v[16:19], s[22:23]")
    a("s_mov_b64 exec, -1")
    if ts:
        stamp(8); a("s_cmp_lt_u32 s9, 28")
    a("s_cbranch_scc0 L_fin")
    if nohop2: a("s_branch L_fin")
    poll("L_h2", 48, h2sleep)()
    stamp(9)
    a("s_nop 1\nv_permlane32_swap_b32 v24, v26\nv_add_f32 v24, v24, v26")
    dppred(24, R16)
    a("v_mov_b32 v25, v24\ns_nop 1\nv_permlane16_swap_b32 v24, v25\nv_add_f32 v24, v24, v25")
    a("v_mov_b32 v25, v24\ns_lshl_b32 s14, s48, 16\ns_and_b32 s15, s48, 0xffff0000\nv_permlane32_swap_b32 v24, v25")
    a("v_add_f32 v24, s14, v24\nv_add_f32 v25, s15, v25")
    a("v_cvt_pk_bf16_f32 v24, v24, v25\nv_mov_b32 v10, s47\nv_mov_b32 v11, 0")
    a("s_mov_b64 exec, 1")
    a("global_store_dword v10, v24, s[20:21]")
    a("s_cmp_eq_u32 s45, 0\ns_cbranch_scc0 L_noep")
    a("global_store_dword v11, v17, s[22:23] sc1")
    a("L_noep:")
    a("s_mov_b64 exec, -1")
    stamp(10)
    if diag is not None:
        a(f"s_nop 1\nv_readlane_b32 s40, v7, {diag}\nv_readlane_b32 s41, v7, {diag0}\ns_sub_u32 s40, s40, s41\ns_min_u32 s40, s40, 20000\ns_add_u32 s40, s40, s100")
        a("L_dspin:\ns_memrealtime s[42:43]\ns_waitcnt lgkmcnt(0)\ns_sub_u32 s42, s42, s40\ns_cmp_lt_i32 s42, 0\ns_cbranch_scc1 L_dspin")
    a("L_fin:")
    if ts:
        a("s_getreg_b32 s10, hwreg(HW_REG_XCC_ID)\nv_writelane_b32 v7, s10, 15")
        a("v_readlane_b32 s3, v7, 14")
        a(f"s_mul_i32 s9, s45, 12\ns_add_u32 s9, s9, s99\ns_lshl_b32 s9, s9, 7\ns_add_u32 s9, s9, {WS_TS}")
        a("v_lshl_add_u32 v8, v0, 2, s9\ns_mov_b32 exec_hi, 0\nglobal_store_dword v8, v7, s[22:23]")
    a("L_end:\ns_endpgm")
    a(kd(NAME, NV, 102, NV))
    t = a.text()
    if ts:
        t = t.replace("s_and_b32 s35, s2, 7", "s_mov_b32 s99, s3\ns_and_b32 s35, s2, 7", 1).replace("v_readlane_b32 s3, v7, 14\n", "")
    return t

if __name__ == "__main__":
    import argparse
    ap = argparse.ArgumentParser()
    ap.add_argument("out")
    ap.add_argument("--opt", default="")
    args = ap.parse_args()
    kw = eval("dict(" + args.opt + ")")
    src = gen(**kw)
    open(args.out, "w").write(src)
    assemble(args.out, NAME, args.out.replace(".s", ".co"))
    print("ok", args.out, len(src))
```

```python
import sys, math
from asmlib import *

NAME = "parallel_sum__gqa_block_cached__dense_activation_relu__decode_kernel"
HDR = open("parallel_sum__gqa_block_cached__dense_activation_relu__decode.s.ref").read().split("; Override launch")[0]

WS_QREC = 0x20000
WS_FREC = 0x40000
WS_ML   = 0x60000
WS_CTR  = 0x70000
WS_H1   = 0x100000
WS_H2   = 0x200000
WS_TS   = 0x400000
WS_NEAR = 0x800000
L_Q, L_H, L_M, L_L, L_F, L_C, L_P, L_G, L_T, L_X, L_K, L_W, L_O = 0, 1024, 1152, 1216, 1280, 1344, 1348, 1360, 1364, 1368, 1352, 1356, 2048
LDS_BYTES = L_O + 16384
DPPF = "row_mask:0xf bank_mask:0xf"
CEXP = 0x3db8aa3b
NV = 168

def gen(ts=False, pol="nt", wpol="nt", spin=1<<22, W=3, burst=3, npre=27, NGH=8, notail=False, noq=False, noweights=False,
        diag=None, diag0=0, wpace=4, fslot=118, gsleep=0, hprio=3, lastpair=True, wlate=False, presleep=0, nogather=False, Wpre=None, noffn=False, prog=False, noml=0, mlsleep=16, mlpre=0, hm="x", qt=15, mt=96, wt=None, h1sleep=0, h2sleep=0, nohop2=False, onepoll=False, nost2=False, dual1=True, dual2=True, endprio=True, h1pre=0, pre1=False, pre2=False, pret=False, wseq=None, wlatew="2o", wpace2=32, ck=None, thr=6, Whi=4, xboost=0, ck0=True, mstep=4, inv=False, lsleep=4, nocomp=False, sprio=0, nopub=False, wall=True, single=True, h2s=16):
    a = Asm()
    a(HDR.rstrip())
    a(f"; @launch grid=(256,1,1) block=(768,1,1) lds={LDS_BYTES}")
    a(f""".amdgcn_target "amdgcn-amd-amdhsa--gfx950"
.text
.globl {NAME}
.p2align 8
.type {NAME},@function
{NAME}:""")
    def stamp(i):
        if ts:
            a(f"s_memrealtime s[100:101]\ns_waitcnt lgkmcnt(0)\nv_writelane_b32 v7, s100, {i}")
    def rowreduce(v, t, op="v_add_f32"):
        a(f"v_mov_b32 v{t}, v{v}\ns_nop 1\nv_permlane16_swap_b32 v{v}, v{t}\n{op} v{v}, v{v}, v{t}")
        a(f"v_mov_b32 v{t}, v{v}\ns_nop 1\nv_permlane32_swap_b32 v{v}, v{t}\n{op} v{v}, v{v}, v{t}")
    def dppred(v, modes, op="v_add_f32"):
        for m in modes:
            a(f"s_nop 1\n{op}_dpp v{v}, v{v}, v{v} {m} {DPPF}")
    def lds_wait(off, cmp, val, lab, bound=None, slp=None):
        a(f"s_mov_b32 s10, {bound or spin}\nv_mov_b32 v38, 0")
        a(f"{lab}:\ns_sleep {slp or lsleep}\nds_read_b32 v39, v38 offset:{off}\ns_sub_u32 s10, s10, 1\ns_cbranch_scc1 {lab}k")
        a(f"s_waitcnt lgkmcnt(0)\n{cmp} vcc, {val}, v39\ns_cbranch_vccnz {lab}\n{lab}k:\ns_waitcnt lgkmcnt(0)")
    SP, QOP, D, XT, ACC, PT = 8, 24, 40, 56, 24, 88
    a("s_cmp_ge_u32 s2, 256\ns_cbranch_scc1 L_end")
    a("s_load_dwordx16 s[4:19], s[0:1], 0")
    a("s_load_dwordx2 s[20:21], s[0:1], 64")
    a("s_load_dwordx2 s[22:23], s[0:1], 80")
    a("v_lshrrev_b32 v1, 6, v0")
    a("v_and_b32 v0, 63, v0")
    if ts: a("v_mov_b32 v7, 0")
    a("v_readfirstlane_b32 s3, v1")
    stamp(0)
    if hm == "x":
        a("s_and_b32 s35, s2, 7")
        a("s_lshr_b32 s2, s2, 3")
    else:
        a("s_and_b32 s35, s2, 7\ns_lshr_b32 s46, s2, 6\ns_lshl_b32 s46, s46, 3\ns_add_u32 s46, s46, s35\ns_bfe_u32 s35, s2, 0x30003\ns_mov_b32 s2, s46")
    a("v_and_b32 v6, 7, v0")
    a("s_lshl_b32 s45, s35, 5\ns_add_u32 s45, s45, s2")
    a("s_cmp_ge_u32 s3, 8\ns_cbranch_scc1 L_helper")
    if sprio: a(f"s_setprio {sprio}")
    a("v_bfe_u32 v2, v0, 4, 1\nv_lshlrev_b32 v2, 11, v2")
    a("v_bfe_u32 v3, v0, 3, 1\nv_lshl_add_u32 v2, v3, 10, v2")
    a("v_lshrrev_b32 v3, 5, v0\nv_lshl_add_u32 v2, v3, 9, v2")
    a("v_lshl_add_u32 v2, v6, 4, v2")
    lg = int(math.log2(NGH)); nwv = 256 // NGH; GS = nwv * 4096
    a(f"s_and_b32 s33, s2, {NGH-1}\ns_lshl_b32 s33, s33, {24-lg}\ns_lshr_b32 s32, s2, {lg}\ns_lshl_b32 s32, s32, 3\ns_add_u32 s32, s32, s3\ns_lshl_b32 s32, s32, 12\ns_add_u32 s33, s33, s32")
    a("s_lshl_b32 s32, s35, 24\ns_mov_b32 s26, 0x1000000\ns_mov_b32 s27, 0x20000")
    a("s_waitcnt lgkmcnt(0)")
    a("s_add_u32 s24, s6, s32\ns_addc_u32 s25, s7, 0")
    if xboost: a("s_getreg_b32 s36, hwreg(HW_REG_XCC_ID)\ns_bitcmp1_b32 s36, 2\ns_cselect_b64 vcc, -1, 0")
    elif ck: a(f"s_mov_b64 vcc, {-1 if inv else 0}")
    late_init = [
                 "s_lshl_b32 s28, s35, 24\ns_add_u32 s28, s8, s28\ns_addc_u32 s29, s9, 0\ns_mov_b32 s30, 0x1000000\ns_mov_b32 s31, 0x20000",
                 "s_mov_b32 s6, 0x05040100\ns_mov_b32 s7, 0x07060302",
                 "v_lshrrev_b32 v3, 4, v0\nv_lshlrev_b32 v3, 9, v3\nv_and_b32 v4, 15, v0\nv_lshl_add_u32 v3, v4, 4, v3",
                 "s_lshl_b32 s9, s3, 6\nv_add_u32 v1, s9, v0",
                 "\n".join(f"v_mov_b32 v{QOP+i}, 0" for i in range(16)),
                 "v_bfe_u32 v5, v0, 3, 1\nv_lshlrev_b32 v5, 9, v5\nv_lshl_add_u32 v5, v6, 4, v5\nv_mov_b32 v4, 0xff800000"]
    kslots = [60 + 4*i for i in range(27)]
    vslots = [104 + 4*i for i in range(16)]
    free = list(kslots)
    reg = {}
    cur = [None]
    def issue(n):
        if n < 64:
            G, lo, srd, vo = n >> 2, (n & 3) * 128, "s[24:27]", "v2"
            cand = [r for r in free if (r < 104 or n < 48)]
            cand.sort(key=lambda r: (r < 104) if n < 48 else r)
        else:
            m = n - 64
            T, hf, e = m >> 4, (m >> 3) & 1, m & 7
            G, lo, srd, vo = 4*T + (e >> 1), (e & 1) * 2048 + hf * 256, "s[28:31]", "v3"
            cand = [r for r in free if r == vslots[m % 16]]
        if not cand: return False
        r = cand[0]; free.remove(r); reg[n] = r
        if G == 0 and n < 64: so = "s33"
        else:
            so = "s32"
            if cur[0] != G:
                a(f"s_add_u32 s32, s33, {G*GS}"); cur[0] = G
        if n >= burst:
            w = wseq(n) if wseq else W
            if (ck and (npre if ck0 else ck[0]) < n and w < Whi) or (xboost and n < xboost and w < Whi):
                a(f"s_waitcnt vmcnt({Whi-1})\ns_cbranch_vccnz L_w{n}\ns_waitcnt vmcnt({w-1})\nL_w{n}:")
            else:
                a(f"s_waitcnt vmcnt({w-1})")
        a(f"buffer_load_dwordx4 v[{r}:{r+3}], {vo}, {srd}, {so} offen offset:{lo} {pol}")
        return True
    chunks = []
    def cM(g):
        def f():
            for t in range(4):
                r = reg[4*g + t]
                a(f"v_mfma_f32_32x32x16_bf16 v[{D}:{D+15}], v[{r}:{r+3}], v[{QOP+4*t}:{QOP+4*t+3}], {'0' if t == 0 else 'v[%d:%d]' % (D, D+15)}")
                free.append(r)
        return f
    def cE(g):
        def f():
            a("s_nop 11")
            for k in (1, 2, 3):
                for q in range(4):
                    a(f"v_add_f32_dpp v{XT+q}, v{D+4*q+k}, v{D+4*q if k == 1 else XT+q} quad_perm:[{k},{k},{k},{k}] {DPPF}")
            a(f"s_nop 1\nv_permlane32_swap_b32 v{XT}, v{XT+1}\nv_permlane32_swap_b32 v{XT+2}, v{XT+3}\ns_nop 0")
            a(f"v_add_f32_dpp v{XT}, v{XT+1}, v{XT} row_shl:4 {DPPF} bound_ctrl:0")
            a(f"v_add_f32_dpp v{XT+2}, v{XT+3}, v{XT+2} row_shl:4 {DPPF} bound_ctrl:0")
            a(f"v_max3_f32 v4, v{XT}, v{XT+2}, v4")
            a(f"v_cvt_pk_bf16_f32 v{SP+g}, v{XT}, v{XT+2}")
        return f
    for g in range(16):
        chunks.append((4*g + 3, cM(g))); chunks.append((0, cE(g)))
    def cS0():
        stamp(4)
        rowreduce(4, 5, "v_max_f32")
        a("v_cvt_pk_bf16_f32 v4, v4, v4\nv_and_b32 v4, 0xffff0000, v4")
        a(f"s_mov_b32 s9, {CEXP}\nv_mul_f32 v4, s9, v4\nv_mov_b32 v5, 0")
    def cS(i0, i1):
        def f():
            for i in range(i0, i1):
                t0, t1 = PT + 2*(i & 3), PT + 2*(i & 3) + 1
                a(f"v_lshlrev_b32 v{t0}, 16, v{SP+i}\nv_and_b32 v{t1}, 0xffff0000, v{SP+i}")
                a(f"v_fma_f32 v{t0}, v{t0}, s9, -v4\nv_fma_f32 v{t1}, v{t1}, s9, -v4")
                a(f"v_exp_f32 v{t0}, v{t0}\nv_exp_f32 v{t1}, v{t1}")
                a(f"v_add_f32 v5, v5, v{t0}\nv_add_f32 v5, v5, v{t1}")
                a(f"v_cvt_pk_bf16_f32 v{SP+i}, v{t0}, v{t1}")
        return f
    def cS1():
        rowreduce(5, 6)
        a("s_lshl_b32 s9, s3, 2\nv_lshl_add_u32 v6, v0, 2, s9")
        a("s_mov_b64 exec, 0x101")
        a(f"ds_write_b32 v6, v4 offset:{L_M}\nds_write_b32 v6, v5 offset:{L_L}")
        a(f"s_mov_b64 exec, 1\nv_mov_b32 v6, 1\nv_mov_b32 v5, 0\nds_add_u32 v5, v6 offset:{L_C}")
        a("s_mov_b64 exec, -1")
    chunks.append((0, cS0))
    for i in range(0, 16, 4): chunks.append((0, cS(i, i+4)))
    chunks.append((0, cS1))
    def mf(ht, d, t):
        T, hf = ht >> 1, ht & 1
        c = ACC + 4*(8*hf + d)
        a(f"v_mfma_f32_16x16x32_bf16 v[{c}:{c+3}], v[{SP+4*T}:{SP+4*T+3}], v[{t}:{t+3}], {'0' if T == 0 else 'v[%d:%d]' % (c, c+3)}")
    def cP(ht, i):
        def f():
            n0 = 64 + 8*ht
            for d in (2*i, 2*i+1):
                t = PT + 4*(d & 3)
                for u in range(4):
                    a(f"v_perm_b32 v{t+u}, v{reg[n0+2*u+1] + (d>>1)}, v{reg[n0+2*u] + (d>>1)}, {'s7' if d & 1 else 's6'}")
            mf(ht, 2*i, PT + 4*((2*i) & 3)); a("s_nop 0"); mf(ht, 2*i+1, PT + 4*((2*i+1) & 3))
            if i == 3:
                for e in range(8): free.append(reg[n0+e])
        return f
    nht = 7 if lastpair else 8
    for ht in range(nht):
        for i in range(4): chunks.append((64 + 8*ht + 7, cP(ht, i)))
    def cF():
        a(f"s_lshl_b32 s9, s3, 3\nv_lshrrev_b32 v5, 5, v0\nv_lshl_add_u32 v4, v5, 2, s9\ns_mov_b32 s10, {spin}")
        a("L_fspin:")
        a(f"ds_read_b32 v6, v4 offset:{L_F}\ns_sub_u32 s10, s10, 1\ns_cbranch_scc1 L_fok")
        a("s_waitcnt lgkmcnt(0)\nv_cmp_gt_i32 s[36:37], 0, v6\ns_cmp_lg_u64 s[36:37], 0\ns_cbranch_scc1 L_fspin")
        a("L_fok:")
        if endprio: a("s_setprio 3")
        a(f"v_mov_b32 v4, 0\nds_read_b32 v2, v4 offset:{L_X}\nds_read_b32 v4, v4 offset:{L_G}\ns_waitcnt lgkmcnt(0)\nv_readfirstlane_b32 s34, v4")
        a("v_lshrrev_b32 v4, 4, v1\nv_lshrrev_b32 v2, v4, v2\nv_and_b32 v2, 1, v2\nv_cmp_ne_u32 s[38:39], 0, v2")
        a("s_lshl_b32 s9, s3, 11\nv_and_b32 v4, 15, v0\nv_lshlrev_b32 v4, 5, v4\nv_lshl_add_u32 v5, v5, 10, v4\nv_add_u32 v5, s9, v5")
        a(f"s_lshl_b32 s9, s45, 12\ns_add_u32 s9, s9, {WS_H1}\nv_lshl_add_u32 v2, v1, 3, s9\nv_lshlrev_b32 v1, 2, v1\ns_waitcnt lgkmcnt(0)")
    ci = 0
    for n in range(128):
        if n == npre:
            stamp(2)
            a("s_barrier")
            a("s_mov_b32 exec_lo, 0x0000ffff\ns_mov_b32 exec_hi, 0xffff0000")
            for t in range(4): a(f"ds_read_b128 v[{QOP+4*t}:{QOP+4*t+3}], v5 offset:{L_Q+128*t}")
            a("s_mov_b64 exec, -1\ns_waitcnt lgkmcnt(0)")
            stamp(3)
        while not issue(n):
            assert n >= npre and chunks[ci][0] <= n - 1 - W, (n, ci)
            chunks[ci][1](); ci += 1
        if prog and n in (3, 4, 6, 10): stamp({3: 11, 4: 12, 6: 13, 10: 14}[n])
        if prog and n % 8 == 7: stamp(16 + n // 8)
        if n >= (burst - 1 if not prog else 12) and late_init: a(late_init.pop(0))
        if n == fslot: cF()
        if ck and n in ck:
            tv = 6 if n < 64 else 4
            a(f"s_mov_b64 exec, 1\nv_mov_b32 v{tv}, {ck.index(n)+1}\nds_max_u32 v0, v{tv} offset:{L_K}\ns_mov_b64 exec, -1")
        if ck and (npre if ck0 else ck[0]) <= n < 126 and n % mstep == 0 and not (64 <= n <= 79):
            tv = 6 if n < 64 else 4
            a(f"v_mov_b32 v{tv}, 0\nds_read_b32 v{tv}, v{tv} offset:{L_W}\ns_waitcnt lgkmcnt(0)\n{'v_cmp_eq_u32' if inv else 'v_cmp_ne_u32'} vcc, 0, v{tv}")
        if n == qt:
            a(f"s_mov_b64 exec, 1\nv_mov_b32 v{XT}, 0\nv_mov_b32 v{XT+1}, 1\nds_write_b32 v{XT}, v{XT+1} offset:{L_T}\ns_mov_b64 exec, -1")
        if wall and n == wt:
            a(f"s_mov_b64 exec, 1\nv_mov_b32 v{PT+15}, 1\nds_add_u32 v0, v{PT+15} offset:{L_C}\ns_mov_b64 exec, -1")
        for ph, slot in ((1, mt), (2, None if wall else wt)):
            if n == slot:
                a(f"s_mov_b64 exec, 1\nv_mov_b32 v{PT+14}, 0\nv_mov_b32 v{PT+15}, {ph}\nds_max_u32 v{PT+14}, v{PT+15} offset:{L_P}\ns_mov_b64 exec, -1")
        if n >= npre and ci < len(chunks) and chunks[ci][0] <= n - W:
            chunks[ci][1](); ci += 1
    assert not late_init
    while ci < len(chunks):
        need = chunks[ci][0]
        if need > 127 - W: a(f"s_waitcnt vmcnt({127 - need})")
        chunks[ci][1](); ci += 1
    if lastpair:
        BS = reg[112]
        assert all(reg[112+e] == BS + 4*e for e in range(8))
        for u in range(4):
            need = 120 + 2*u + 1
            if need > 127 - W: a(f"s_waitcnt vmcnt({127 - need})")
            if u == 3: stamp(5)
            for d in range(8):
                a(f"v_perm_b32 v{BS+4*d+u}, v{reg[120+2*u+1] + (d>>1)}, v{reg[120+2*u] + (d>>1)}, {'s7' if d & 1 else 's6'}")
                if u == 3 and d >= 2: mf(7, d-2, BS+4*(d-2))
            if u == 2:
                for i in range(8): a(f"v_mul_f32 v{PT+i}, v6, v{ACC+4*i}")
                a("s_mov_b32 exec_lo, 0x0000ffff\ns_mov_b32 exec_hi, 0x0000ffff")
                for i in range(2): a(f"ds_write_b128 v5, v[{PT+4*i}:{PT+4*i+3}] offset:{L_O + i*16}")
                a("s_mov_b64 exec, -1")
        mf(7, 6, BS+24); a("s_nop 0"); mf(7, 7, BS+28)
        a("s_mov_b32 exec_lo, 0x0000ffff\ns_mov_b32 exec_hi, 0x0000ffff")
        for i in range(8, 12): a(f"v_mul_f32 v{PT+i}, v6, v{ACC+4*i}")
        a(f"ds_write_b128 v5, v[{PT+8}:{PT+11}] offset:{L_O + 512}")
        a("s_nop 0")
        for i in range(12, 16): a(f"v_mul_f32 v{PT+i}, v6, v{ACC+4*i}")
        a(f"ds_write_b128 v5, v[{PT+12}:{PT+15}] offset:{L_O + 512 + 16}")
        a("s_mov_b64 exec, -1")
    else:
        stamp(5)
        a("s_nop 7")
        for i in range(16): a(f"v_mul_f32 v{PT+i}, v6, v{ACC+4*i}")
        a("s_mov_b32 exec_lo, 0x0000ffff\ns_mov_b32 exec_hi, 0x0000ffff")
        for i in range(4): a(f"ds_write_b128 v5, v[{PT+4*i}:{PT+4*i+3}] offset:{L_O + (i>>1)*512 + (i&1)*16}")
        a("s_mov_b64 exec, -1")
    a(f"v_mov_b32 v9, s34\nv_add_u32 v3, {WS_NEAR}, v2")
    a("s_waitcnt lgkmcnt(0)\ns_barrier")
    for j in range(4):
        a(f"ds_read2st64_b32 v[{24+2*j}:{25+2*j}], v1 offset0:{L_O//256 + 16*j} offset1:{L_O//256 + 16*j + 8}")
    a("s_waitcnt lgkmcnt(2)\nv_add_f32 v24, v24, v25\nv_add_f32 v26, v26, v27\nv_add_f32 v24, v24, v26")
    a("s_waitcnt lgkmcnt(0)\nv_add_f32 v28, v28, v29\nv_add_f32 v30, v30, v31\nv_add_f32 v28, v28, v30\nv_add_f32 v8, v24, v28")
    if single:
        a("s_mov_b64 exec, s[38:39]\ns_cbranch_execz L_p1\nglobal_store_dwordx2 v3, v[8:9], s[22:23]\nL_p1:")
        a("s_not_b64 exec, s[38:39]\ns_cbranch_execz L_p2\nglobal_store_dwordx2 v2, v[8:9], s[22:23] sc1\nL_p2:\ns_mov_b64 exec, -1")
    else:
        if dual1 and not nopub: a("global_store_dwordx2 v3, v[8:9], s[22:23]")
        if not nopub: a("global_store_dwordx2 v2, v[8:9], s[22:23] sc1")
    stamp(6)
    a("s_branch L_fin")
    a("L_helper:")
    a(f"s_setprio {hprio}")
    a("s_mul_i32 s44, s35, 14\ns_add_u32 s44, s44, s2")
    a("s_sub_u32 s3, s3, 8")
    a("s_waitcnt lgkmcnt(0)")
    a("s_load_dword s34, s[22:23], 0")
    a("s_mov_b32 s6, 0x05040100\ns_mov_b32 s7, 0x07060302")
    if noq: a("s_branch L_hinit")
    a("s_cmp_ge_u32 s3, 2\ns_cbranch_scc1 L_hinit")
    a("s_cmp_eq_u32 s3, 0\ns_cbranch_scc1 L_gemv")
    a(f"s_cmp_ge_u32 s2, {0 if noffn else 14}\ns_cbranch_scc1 L_hinit")
    a("L_gemv:")
    a(f"v_mov_b32 v4, 0\nds_write_b32 v4, v4 offset:{L_T}")
    a("s_lshl_b32 s9, s35, 3\ns_and_b32 s50, s2, 7\ns_add_u32 s9, s9, s50")
    a("s_lshr_b32 s50, s2, 3\ns_lshr_b32 s46, s44, 2\ns_and_b32 s47, s44, 3")
    a(f"s_lshl_b32 s48, s45, 9\ns_add_u32 s48, s48, {WS_QREC}\ns_lshl_b32 s49, s44, 9\ns_add_u32 s49, s49, {WS_FREC}")
    a("s_mov_b32 s38, 1605632\ns_mov_b32 s41, 3584")
    a("s_cmp_eq_u32 s3, 0")
    a("s_cselect_b32 s36, s10, s16\ns_cselect_b32 s37, s11, s17\ns_cselect_b32 s38, 3670016, s38\ns_mov_b32 s39, 0x20000")
    a("s_cselect_b32 s41, 8192, s41\ns_cselect_b32 s42, s9, s46\ns_cselect_b32 s50, s50, s47\ns_cselect_b32 s48, s48, s49")
    a("v_lshrrev_b32 v4, 1, v0\nv_mul_u32_u24 v5, 28, v4")
    a("global_load_dwordx4 v[8:11], v5, s[4:5]\nglobal_load_dwordx3 v[12:14], v5, s[4:5] offset:16")
    a("v_lshrrev_b32 v4, 3, v0\ns_mul_i32 s46, s50, 224\nv_mul_u32_u24 v5, 28, v4\nv_add_u32 v5, s46, v5")
    a("global_load_dwordx4 v[56:59], v5, s[4:5]\nglobal_load_dwordx3 v[60:62], v5, s[4:5] offset:16")
    a("s_mul_i32 s43, s41, 14\nv_mul_lo_u32 v5, v4, s43\nv_lshl_add_u32 v5, v6, 4, v5")
    a("s_lshl_b32 s42, s42, 7\ns_mul_i32 s46, s50, 112\ns_mul_i32 s46, s46, s41\ns_add_u32 s42, s42, s46")
    WB = 96
    for i in range(14):
        a(f"buffer_load_dwordx4 v[{WB+4*i}:{WB+4*i+3}], v5, s[36:39], s42 offen {wpol}")
        if i < 13: a("s_add_u32 s42, s42, s41")
    a("s_waitcnt vmcnt(16)")
    if prog: stamp(11)
    XF = 16
    PAR = ("quad_perm:[2,3,0,1]", "row_ror:4", "row_ror:8")
    for u in range(7):
        a(f"v_lshlrev_b32 v{XF+2*u}, 16, v{8+u}\nv_and_b32 v{XF+2*u+1}, 0xffff0000, v{8+u}")
    a(f"v_add_f32 v30, v{XF}, v{XF+1}")
    for i in range(2, 14): a(f"v_add_f32 v30, v30, v{XF+i}")
    dppred(30, PAR); rowreduce(30, 31)
    a("v_mul_f32 v30, 0x3b124925, v30")
    a(f"v_sub_f32 v32, v{XF}, v30\nv_mul_f32 v33, v32, v32")
    for i in range(1, 14): a(f"v_sub_f32 v32, v{XF+i}, v30\nv_fmac_f32 v33, v32, v32")
    dppred(33, PAR); rowreduce(33, 31)
    a("v_mul_f32 v33, 0x3b124925, v33")
    a("v_cvt_pk_bf16_f32 v30, v30, v33")
    a("v_and_b32 v33, 0xffff0000, v30\nv_lshlrev_b32 v30, 16, v30")
    a("v_add_f32 v33, 0x3727c5ac, v33")
    a("v_cvt_pk_bf16_f32 v33, v33, v33\nv_and_b32 v33, 0xffff0000, v33")
    a("v_sqrt_f32 v33, v33\ns_nop 0")
    a("v_cvt_pk_bf16_f32 v33, v33, v33\nv_and_b32 v33, 0xffff0000, v33")
    a("v_rcp_f32 v33, v33")
    a("s_waitcnt vmcnt(14)")
    for u in range(7):
        a(f"v_lshlrev_b32 v16, 16, v{56+u}\nv_and_b32 v17, 0xffff0000, v{56+u}")
        a(f"v_sub_f32 v16, v16, v30\nv_sub_f32 v17, v17, v30")
        a(f"v_cvt_pk_bf16_f32 v17, v16, v17")
        a(f"v_lshlrev_b32 v16, 16, v17\nv_and_b32 v17, 0xffff0000, v17")
        a(f"v_mul_f32 v16, v16, v33\nv_mul_f32 v17, v17, v33")
        a(f"v_cvt_pk_bf16_f32 v{8+u}, v16, v17")
    GA = 40
    for u in range(7):
        a(f"s_waitcnt vmcnt({12-2*u})")
        if prog and u in (0, 3, 6): stamp({0: 12, 3: 13, 6: 14}[u])
        for w in range(4):
            r0, r1 = WB + 8*u + w, WB + 8*u + 4 + w
            a(f"v_perm_b32 v{48+2*w}, v{r1}, v{r0}, s6\nv_perm_b32 v{49+2*w}, v{r1}, v{r0}, s7")
        for c in range(8):
            a(f"v_dot2_f32_bf16 v{GA+c}, v{48+c}, v{8+u}, {'0' if u == 0 else 'v%d' % (GA+c)}")
    a("s_waitcnt lgkmcnt(0)\ns_add_u32 s51, s34, 1\ns_nop 0")
    for c in range(4): a(f"v_permlane32_swap_b32 v{GA+c}, v{GA+c+4}")
    for c in range(4): a(f"v_add_f32 v{GA+c}, v{GA+c}, v{GA+c+4}")
    a("v_lshrrev_b32 v4, 4, v0")
    for c in range(2): a(f"v_permlane16_swap_b32 v{GA+c}, v{GA+c+2}")
    for c in range(2): a(f"v_add_f32 v{GA+c}, v{GA+c}, v{GA+c+2}")
    a("v_lshl_add_u32 v4, v6, 2, v4")
    a(f"v_add_f32_dpp v{GA}, v{GA}, v{GA} row_ror:8 {DPPF}")
    a(f"v_add_f32_dpp v{GA+2}, v{GA+1}, v{GA+1} row_ror:8 {DPPF}")
    a(f"v_mov_b32 v{GA+1}, s51\nv_mov_b32 v{GA+3}, s51")
    a("v_lshl_add_u32 v4, v4, 4, s48")
    a("s_mov_b32 exec_lo, 0x00ff00ff\ns_mov_b32 exec_hi, 0x00ff00ff")
    a(f"global_store_dwordx4 v4, v[{GA}:{GA+3}], s[22:23] sc1")
    a("s_mov_b64 exec, -1")
    stamp(1)
    a("s_cmp_eq_u32 s3, 0\ns_cbranch_scc0 L_hinit")
    a(f"s_lshl_b32 s9, s35, 14\ns_add_u32 s9, s9, {WS_QREC}")
    a("v_lshl_add_u32 v8, v0, 4, s9\nv_add_u32 v9, 4096, v8\nv_add_u32 v10, 8192, v8\nv_add_u32 v11, 12288, v8")
    a("s_sub_u32 s50, s44, 18\ns_and_b32 s46, s50, 3\ns_andn2_b32 s50, s50, 3")
    a(f"s_lshl_b32 s50, s50, 9\ns_lshl_b32 s46, s46, 7\ns_add_u32 s50, s50, s46\ns_add_u32 s50, s50, {WS_FREC}")
    a("s_cmp_ge_u32 s2, 18\ns_cselect_b32 s50, s50, s9")
    a("v_lshrrev_b32 v12, 4, v0\nv_lshlrev_b32 v12, 9, v12\nv_lshl_add_u32 v12, v6, 4, v12\nv_add_u32 v12, s50, v12")
    a(f"s_mov_b32 s9, {spin}")
    lds_wait(L_T, "v_cmp_ne_u32", 1, "L_qw", bound=2000)
    a("s_branch L_gpoll1")
    if nogather: a("s_branch L_hinit")
    a("L_gpoll:")
    a(f"s_sleep {gsleep or 16}\nL_gpoll1:")
    GB = 96
    for rq in range(4):
        for j in range(4):
            r = GB + 16*j + 4*rq
            a(f"global_load_dwordx4 v[{r}:{r+3}], v{8+rq}, s[22:23] offset:{1024*j} sc1")
    a(f"global_load_dwordx4 v[{GB+64}:{GB+67}], v12, s[22:23] sc1")
    a("s_sub_u32 s9, s9, 1\ns_cbranch_scc1 L_gok")
    a("v_mov_b32 v16, 0")
    for i in range(17):
        rq, j = i >> 2, i & 3
        r = GB + 16*j + 4*rq if i < 16 else GB + 64
        a(f"s_waitcnt vmcnt({16-i})")
        a(f"v_xor_b32 v17, s51, v{r+1}\nv_xor_b32 v18, s51, v{r+3}\nv_or3_b32 v16, v16, v17, v18")
    a("v_cmp_ne_u32 vcc, 0, v16\ns_cbranch_vccnz L_gpoll")
    a("L_gok:")
    a("s_waitcnt vmcnt(0)")
    a("v_lshlrev_b32 v4, 2, v0")
    for j in range(4):
        r = GB + 16*j
        a(f"v_add_f32 v{r}, v{r}, v{r+4}\nv_add_f32 v{r+2}, v{r+2}, v{r+6}\nv_add_f32 v{r+8}, v{r+8}, v{r+12}\nv_add_f32 v{r+10}, v{r+10}, v{r+14}")
        a(f"v_add_f32 v{r}, v{r}, v{r+8}\nv_add_f32 v{r+2}, v{r+2}, v{r+10}")
        a(f"v_cvt_pk_bf16_f32 v{r}, v{r}, v{r+2}")
        a(f"ds_write_b32 v4, v{r} offset:{L_Q + 256*j}")
    rowreduce(GB+64, 16)
    rowreduce(GB+66, 16)
    a(f"v_max_f32 v{GB+64}, 0, v{GB+64}\nv_max_f32 v{GB+66}, 0, v{GB+66}\nv_cvt_pk_bf16_f32 v16, v{GB+64}, v{GB+66}")
    a("s_mov_b64 exec, 0xff")
    a(f"ds_write_b32 v4, v16 offset:{L_H}")
    a("s_mov_b64 exec, -1")
    a("s_branch L_hbar")
    a("L_hinit:")
    if ck:
        a(f"s_lshl_b32 s9, s2, 8\ns_add_u32 s9, s9, {WS_CTR}\ns_add_u32 s54, s22, s9\ns_addc_u32 s55, s23, 0")
        a("s_lshl_b32 s10, s35, 2\ns_add_u32 s10, s10, s3\ns_cmp_eq_u32 s10, 2\ns_cbranch_scc0 L_noci")
        a("v_mov_b32 v4, s9\nv_mov_b32 v5, 0\ns_mov_b64 exec, 1\nglobal_store_dword v4, v5, s[22:23] sc1\ns_mov_b64 exec, -1")
        a("L_noci:")
    a("v_lshlrev_b32 v4, 2, v0\nv_cmp_gt_u32 vcc, 16, v0\nv_mov_b32 v5, 0\nv_mov_b32 v8, -1\nv_cndmask_b32 v5, v5, v8, vcc")
    a(f"s_mov_b64 exec, 0xfffff\nds_write_b32 v4, v5 offset:{L_F}\ns_mov_b64 exec, -1")
    a("L_hbar:")
    a("s_waitcnt lgkmcnt(0)\ns_add_u32 s34, s34, 1")
    a(f"v_mov_b32 v4, 0\nv_mov_b32 v5, s34\nds_write_b32 v4, v5 offset:{L_G}\ns_waitcnt lgkmcnt(0)")
    stamp(2)
    a("s_barrier")
    a("s_sub_u32 s9, s44, 18\ns_mul_i32 s9, s9, 14336")
    a("s_cmp_ge_u32 s2, 18\ns_cselect_b32 s9, s9, 0\ns_cselect_b32 s42, 14336, 0")
    a("s_add_u32 s40, s18, s9\ns_addc_u32 s41, s19, 0\ns_mov_b32 s43, 0x20000")
    a("s_mul_i32 s9, s45, 14336")
    a("s_add_u32 s36, s12, s9\ns_addc_u32 s37, s13, 0\ns_mov_b32 s38, 14336\ns_mov_b32 s39, 0x20000")
    a("s_lshl_b32 s9, s3, 6\nv_add_u32 v1, s9, v0")
    a("v_lshlrev_b32 v2, 2, v1\nv_mov_b32 v3, 0x100000\nv_cmp_gt_u32 vcc, 224, v1\ns_mov_b64 s[52:53], vcc\ns_nop 0\nv_cndmask_b32 v2, v3, v2, vcc")
    WO, W2, WP = 96, 112, 128
    wp = [wpace]
    def wloads(base, srd):
        for d in range(16):
            if d % 4 == 0: a(f"s_mov_b32 s9, {896*d}")
            a(f"s_waitcnt vmcnt({wp[0]-1})")
            a(f"buffer_load_dword v{base+d}, v2, {srd}, s9 offen offset:{896*(d%4)} {wpol}")
    def w_issue(which):
        if noweights: return
        if "2" in which:
            a("s_cmp_ge_u32 s2, 18\ns_cbranch_scc0 L_now2")
            wloads(W2, "s[40:43]")
            a("L_now2:")
        if "o" in which: wloads(WO, "s[36:39]")
    def w_finish(which):
        a("s_waitcnt vmcnt(0)")
        if "2" in which:
            a(f"v_mov_b32 v4, 0\nds_read_b128 v[8:11], v4 offset:{L_H}\nds_read_b128 v[12:15], v4 offset:{L_H+16}")
            a("v_mov_b32 v16, 0\nv_mov_b32 v18, 0\nv_mov_b32 v17, s34\nv_mov_b32 v19, s34")
            a("s_waitcnt lgkmcnt(0)")
            a("s_cmp_ge_u32 s2, 18\ns_cbranch_scc0 L_noffn")
            for u in range(8):
                a(f"v_perm_b32 v{WP+u}, v{W2+2*u+1}, v{W2+2*u}, s6\nv_perm_b32 v{WP+8+u}, v{W2+2*u+1}, v{W2+2*u}, s7")
            for u in range(8):
                a(f"v_dot2_f32_bf16 v16, v{WP+u}, v{8+u}, v16\nv_dot2_f32_bf16 v18, v{WP+8+u}, v{8+u}, v18")
            a("L_noffn:")
        if "o" in which:
            for u in range(8):
                a(f"v_perm_b32 v{WP+u}, v{WO+2*u+1}, v{WO+2*u}, s6\nv_perm_b32 v{WP+8+u}, v{WO+2*u+1}, v{WO+2*u}, s7")
    early = "".join(c for c in "2o" if c not in (wlatew if wt else ""))
    late = wlatew if wt else ""
    if early: w_issue(early); w_finish(early)
    stamp(3)
    if ck:
        a("s_cmp_eq_u32 s3, 2\ns_cbranch_scc0 L_noctl")
        a(f"s_lshl_b32 s9, s2, 8\ns_add_u32 s9, s9, {WS_CTR}\ns_add_u32 s54, s22, s9\ns_addc_u32 s55, s23, 0")
        a(f"s_mov_b32 s11, 0\ns_mov_b32 s49, {thr}")
        if not ck0: a(f"s_mov_b32 s49, {thr-8}\ns_branch L_ctl1")
        a("L_ctl:")
        a("s_mov_b32 s9, 1\ns_atomic_add s9, s[54:55], 0 glc\ns_waitcnt lgkmcnt(0)")
        a(f"s_cmp_ge_i32 s9, s49\ns_cselect_b32 s9, {'0, 1' if inv else '1, 0'}\nv_mov_b32 v4, 0\nv_mov_b32 v5, s9\nds_write_b32 v4, v5 offset:{L_W}")
        a("L_ctl1:")
        a(f"s_add_u32 s11, s11, 1\ns_add_u32 s49, s49, 8\ns_cmp_gt_u32 s11, {len(ck)}\ns_cbranch_scc1 L_noctl")
        lds_wait(L_K, "v_cmp_gt_u32", "s11", "L_kw")
        a("s_branch L_ctl")
        a("L_noctl:")
    a("s_cmp_eq_u32 s3, 1\ns_cbranch_scc0 L_noml")
    lds_wait(L_C, "v_cmp_gt_u32", 8, "L_cw")
    a("v_lshrrev_b32 v4, 5, v0\nv_lshlrev_b32 v5, 5, v4\nv_lshl_add_u32 v5, v6, 2, v5")
    a(f"ds_read_b32 v20, v5 offset:{L_M}\nds_read_b32 v21, v5 offset:{L_L}")
    a(f"s_lshl_b32 s9, s45, 5\ns_add_u32 s9, s9, {WS_ML}\nv_lshl_add_u32 v28, v4, 4, s9")
    a(f"s_lshl_b32 s9, s35, 10\ns_add_u32 s9, s9, {WS_ML}\nv_and_b32 v29, 31, v0\nv_lshlrev_b32 v29, 5, v29\nv_lshl_add_u32 v29, v4, 4, v29\nv_add_u32 v29, s9, v29")
    a("s_getreg_b32 s11, hwreg(HW_REG_XCC_ID)\ns_and_b32 s11, s11, 15\ns_xor_b32 s9, s11, s34")
    a("v_mov_b32 v25, s34\nv_mov_b32 v27, s9")
    a("s_waitcnt lgkmcnt(0)\nv_mov_b32 v24, v20")
    R8 = ("quad_perm:[1,0,3,2]", "quad_perm:[2,3,0,1]", "row_half_mirror")
    dppred(24, R8, "v_max_f32")
    a("v_sub_f32 v26, v20, v24\nv_exp_f32 v26, v26\ns_nop 0\nv_mul_f32 v26, v26, v21")
    dppred(26, R8)
    if noml == 1: a("s_branch L_mlk")
    a("s_mov_b32 exec_lo, 1\ns_mov_b32 exec_hi, 1\nglobal_store_dwordx4 v28, v[24:27], s[22:23] sc1\ns_mov_b64 exec, -1")
    a(f"s_mov_b32 s10, {spin}")
    if noml == 2: a("s_branch L_mlk")
    lds_wait(L_P, "v_cmp_gt_u32", 1, "L_mw")
    a(f"s_mov_b32 s10, {spin}\ns_branch L_mlp1")
    a(f"L_mlp:\ns_sleep {mlsleep}\nL_mlp1:\nglobal_load_dwordx4 v[32:35], v29, s[22:23] sc1\ns_sub_u32 s10, s10, 1\ns_cbranch_scc1 L_mlk")
    a("s_waitcnt vmcnt(0)\nv_xor_b32 v36, s34, v33\nv_xor_b32 v37, s34, v35\nv_and_or_b32 v36, v37, -16, v36\nv_cmp_ne_u32 vcc, 0, v36\ns_cbranch_vccnz L_mlp")
    a("L_mlk:\ns_waitcnt vmcnt(0)\nv_mov_b32 v24, v32")
    a(f"v_cmp_eq_u32 vcc, s9, v35\nv_mov_b32 v36, 0\ns_nop 0\nv_mov_b32 v37, vcc_lo\nds_write_b32 v36, v37 offset:{L_X}")
    R16 = ("quad_perm:[1,0,3,2]", "quad_perm:[2,3,0,1]", "row_ror:4", "row_ror:8")
    dppred(24, R16, "v_max_f32")
    a("v_mov_b32 v36, v24\ns_nop 1\nv_permlane16_swap_b32 v24, v36\nv_max_f32 v24, v24, v36")
    a("v_sub_f32 v26, v32, v24\nv_exp_f32 v26, v26\ns_nop 0\nv_mul_f32 v26, v26, v34")
    dppred(26, R16)
    a("v_mov_b32 v36, v26\ns_nop 1\nv_permlane16_swap_b32 v26, v36\nv_add_f32 v26, v26, v36")
    a("v_sub_f32 v20, v20, v24\nv_exp_f32 v20, v20\nv_rcp_f32 v26, v26\ns_nop 0\nv_mul_f32 v20, v20, v26\nv_and_b32 v20, 0x7fffffff, v20")
    a("v_lshlrev_b32 v5, 2, v4\nv_lshl_add_u32 v5, v6, 3, v5")
    a(f"s_mov_b32 exec_lo, 0xff\ns_mov_b32 exec_hi, 0xff\nds_write_b32 v5, v20 offset:{L_F}\ns_mov_b64 exec, -1")
    stamp(4)
    a("L_noml:")

    a(f"s_lshl_b32 s9, s35, 17\ns_lshl_b32 s10, s2, 7\ns_add_u32 s9, s9, s10\ns_add_u32 s9, s9, {WS_H1}")
    a("v_lshrrev_b32 v40, 3, v0\nv_lshlrev_b32 v40, 12, v40\nv_lshl_add_u32 v40, v6, 4, v40\nv_add_u32 v40, s9, v40")
    for i in range(1, 4): a(f"v_add_u32 v{40+i}, {32768*i}, v40")
    a(f"s_lshl_b32 s9, s45, 12\ns_add_u32 s9, s9, {WS_H2}\nv_lshl_add_u32 v44, v1, 4, s9")
    a("s_mul_i32 s46, s35, 28\ns_add_u32 s46, s46, s2\ns_min_u32 s46, s46, 223\ns_lshl_b32 s47, s46, 2\ns_load_dword s48, s[4:5], s47")
    a(f"s_lshl_b32 s9, s46, 4\ns_add_u32 s9, s9, {WS_H2}\nv_lshl_add_u32 v48, v0, 12, s9")
    for i in range(1, 4): a(f"v_add_u32 v{48+i}, {i*64*4096}, v48")
    lds_wait(L_F, "v_cmp_gt_i32", 0, "L_xw")
    a(f"ds_read_b32 v39, v38 offset:{L_X}\nv_lshrrev_b32 v52, 3, v0\nv_add_u32 v45, {WS_NEAR}, v44\ns_waitcnt lgkmcnt(0)")
    if dual1:
        a("v_lshrrev_b32 v53, v52, v39")
        for i in range(4):
            a(f"v_bfe_u32 v54, v53, {8*i}, 1\nv_lshl_add_u32 v{40+i}, v54, 23, v{40+i}")
    if dual2:
        a("v_and_b32 v53, 31, v0\nv_lshrrev_b32 v53, v53, v39\nv_and_b32 v53, 1, v53\nv_lshrrev_b32 v54, 5, v0")
        for i in range(4):
            a(f"v_add_u32 v55, {2*i}, v54\nv_cmp_eq_u32 vcc, s35, v55\nv_mov_b32 v56, 0\ns_nop 0\nv_cndmask_b32 v55, v56, v53, vcc\nv_lshl_add_u32 v{48+i}, v55, 23, v{48+i}")
    if single:
        a("s_mul_i32 s9, s35, 28\nv_subrev_u32 v53, s9, v1\nv_lshrrev_b32 v54, v53, v39\nv_and_b32 v54, 1, v54")
        a("v_cmp_gt_u32 vcc, 28, v53\nv_cmp_ne_u32 s[76:77], 0, v54\ns_and_b64 s[76:77], s[76:77], vcc\ns_andn2_b64 s[78:79], s[52:53], s[76:77]")
    if pre1 or pre2 or pret:
        a("s_cmp_eq_u32 s3, 0\ns_cbranch_scc0 L_nopre")
        if pre1:
            for i in range(4): a(f"global_load_dwordx4 v[{24+4*i}:{27+4*i}], v{40+i}, s[22:23] sc1\ns_waitcnt vmcnt(0)")
        if pre2:
            for i in range(4): a(f"global_load_dwordx4 v[{24+4*i}:{27+4*i}], v{48+i}, s[22:23] sc1\ns_waitcnt vmcnt(0)")
        if pret:
            a(f"s_lshl_b32 s9, s45, 12\ns_add_u32 s9, s9, {WS_H2 + 3584}\nv_mov_b32 v24, s9\nv_add_u32 v25, {WS_NEAR}, v24")
            a(f"v_mov_b32 v26, {WS_H1 - 128}\nv_add_u32 v27, {WS_NEAR}, v26")
            for i in range(4): a(f"global_load_dword v{28+i}, v{24+i}, s[22:23] sc1")
            a("v_mov_b32 v24, 0\nglobal_load_dword v32, v24, s[20:21]\ns_waitcnt vmcnt(0)")
        a("L_nopre:")
    def poll(lab, areg, slp):
        for i in range(4): a(f"s_mov_b64 s[{56+2*i}:{57+2*i}], -1")
        a(f"s_mov_b32 s10, {spin}")
        def body():
            if slp: a(f"s_branch {lab}e\n{lab}:\ns_sleep {slp}\n{lab}e:")
            else: a(f"{lab}:")
            for i in range(4):
                a(f"s_mov_b64 exec, s[{56+2*i}:{57+2*i}]\ns_cbranch_execz {lab}s{i}")
                a(f"global_load_dwordx4 v[{24+4*i}:{27+4*i}], v{areg+i}, s[22:23] sc1\n{lab}s{i}:")
            a(f"s_mov_b64 exec, -1\ns_sub_u32 s10, s10, 1\ns_cbranch_scc1 {lab}k\ns_waitcnt vmcnt(0)")
            for i in range(4):
                a(f"v_cmp_ne_u32 vcc, s34, v{25+4*i}\nv_cmp_ne_u32 s[{56+2*i}:{57+2*i}], s34, v{27+4*i}\ns_or_b64 s[{56+2*i}:{57+2*i}], s[{56+2*i}:{57+2*i}], vcc")
            a("s_or_b64 s[64:65], s[56:57], s[58:59]\ns_or_b64 s[66:67], s[60:61], s[62:63]\ns_or_b64 s[64:65], s[64:65], s[66:67]")
            a(f"s_cbranch_scc1 {lab}\n{lab}k:\ns_waitcnt vmcnt(0)")
            a("v_add_f32 v24, v24, v28\nv_add_f32 v26, v26, v30\nv_add_f32 v32, v32, v36\nv_add_f32 v34, v34, v38\nv_add_f32 v24, v24, v32\nv_add_f32 v26, v26, v34")
        return body
    if late:
        if wall: lds_wait(L_C, "v_cmp_gt_u32", 16, "L_ww", slp=1)
        else: lds_wait(L_P, "v_cmp_gt_u32", 2, "L_ww")
        wp[0] = wpace2
        w_issue(late)
    if endprio: a("s_setprio 0")
    b1 = poll("L_h1", 40, h1sleep)
    a("s_waitcnt lgkmcnt(0)")
    stamp(5)
    a("s_barrier")
    if notail: a("s_branch L_fin")
    if onepoll: a("s_cmp_eq_u32 s3, 0\ns_cbranch_scc0 L_fin")
    if late: w_finish(late)
    elif h1pre: a(f"s_sleep {h1pre}")
    b1()
    stamp(7)
    a("s_nop 1\nv_permlane32_swap_b32 v24, v26\nv_add_f32 v24, v24, v26")
    a(f"s_nop 1\nv_add_f32_dpp v24, v24, v24 row_ror:8 {DPPF}")
    a("v_mov_b32 v25, v24\ns_nop 1\nv_permlane16_swap_b32 v24, v25\nv_add_f32 v24, v24, v25")
    a("v_mov_b32 v25, v24\ns_nop 1\nv_permlane32_swap_b32 v24, v25")
    a("v_cvt_pk_bf16_f32 v24, v24, v25\ns_nop 0")
    for u in range(8): a(f"v_readlane_b32 s{68+u}, v24, {u}")
    a("s_mov_b64 exec, s[52:53]")
    for u in range(8):
        a(f"v_dot2_f32_bf16 v16, v{WP+u}, s{68+u}, v16\nv_dot2_f32_bf16 v18, v{WP+8+u}, s{68+u}, v18")
    a("s_cmp_eq_u32 s3, 0\ns_cselect_b32 s9, s2, 99\ns_cmp_lt_u32 s9, 28")
    if single:
        a("s_mov_b64 exec, s[78:79]\ns_cbranch_execz L_p3\nglobal_store_dwordx4 v44, v[16:19], s[22:23] sc1\nL_p3:")
        a("s_mov_b64 exec, s[76:77]\ns_cbranch_execz L_p4\nglobal_store_dwordx4 v45, v[16:19], s[22:23]\nL_p4:")
    else:
        if not nost2: a("global_store_dwordx4 v44, v[16:19], s[22:23] sc1")
        if dual2: a("global_store_dwordx4 v45, v[16:19], s[22:23]")
    a("s_mov_b64 exec, -1")
    if ts:
        stamp(8); a("s_cmp_lt_u32 s9, 28")
    a("s_cbranch_scc0 L_fin")
    if nohop2: a("s_branch L_fin")
    poll("L_h2", 48, h2sleep)()
    stamp(9)
    a("s_nop 1\nv_permlane32_swap_b32 v24, v26\nv_add_f32 v24, v24, v26")
    dppred(24, R16)
    a("v_mov_b32 v25, v24\ns_nop 1\nv_permlane16_swap_b32 v24, v25\nv_add_f32 v24, v24, v25")
    a("v_mov_b32 v25, v24\ns_lshl_b32 s14, s48, 16\ns_and_b32 s15, s48, 0xffff0000\nv_permlane32_swap_b32 v24, v25")
    a("v_add_f32 v24, s14, v24\nv_add_f32 v25, s15, v25")
    a("v_cvt_pk_bf16_f32 v24, v24, v25\nv_mov_b32 v10, s47\nv_mov_b32 v11, 0")
    a("s_mov_b64 exec, 1")
    a("global_store_dword v10, v24, s[20:21]")
    a("s_cmp_eq_u32 s45, 0\ns_cbranch_scc0 L_noep")
    a("global_store_dword v11, v17, s[22:23] sc1")
    a("L_noep:")
    a("s_mov_b64 exec, -1")
    stamp(10)
    if diag is not None:
        a(f"s_nop 1\nv_readlane_b32 s40, v7, {diag}\nv_readlane_b32 s41, v7, {diag0}\ns_sub_u32 s40, s40, s41\ns_min_u32 s40, s40, 20000\ns_add_u32 s40, s40, s100")
        a("L_dspin:\ns_memrealtime s[42:43]\ns_waitcnt lgkmcnt(0)\ns_sub_u32 s42, s42, s40\ns_cmp_lt_i32 s42, 0\ns_cbranch_scc1 L_dspin")
    a("L_fin:")
    if ts:
        a("s_getreg_b32 s10, hwreg(HW_REG_XCC_ID)\nv_writelane_b32 v7, s10, 15")
        a("v_readlane_b32 s3, v7, 14")
        a(f"s_mul_i32 s9, s45, 12\ns_add_u32 s9, s9, s99\ns_lshl_b32 s9, s9, 7\ns_add_u32 s9, s9, {WS_TS}")
        a("v_lshl_add_u32 v8, v0, 2, s9\ns_mov_b32 exec_hi, 0\nglobal_store_dword v8, v7, s[22:23]")
    a("L_end:\ns_endpgm")
    a(kd(NAME, NV, 102, NV))
    t = a.text()
    if nocomp:
        i0 = t.index("s_barrier"); i1 = t.index("L_helper:")
        body = [l for l in t[i0:i1].split("\n") if not any(l.startswith(p) for p in ("v_mfma", "v_perm_b32", "v_add_f32_dpp", "v_exp", "v_fma", "s_nop 11", "v_cvt_pk", "v_permlane", "v_max3"))]
        t = t[:i0] + "\n".join(body) + t[i1:]
    if ts:
        t = t.replace("s_and_b32 s35, s2, 7", "s_mov_b32 s99, s3\ns_and_b32 s35, s2, 7", 1).replace("v_readlane_b32 s3, v7, 14\n", "")
    return t

if __name__ == "__main__":
    import argparse
    ap = argparse.ArgumentParser()
    ap.add_argument("out")
    ap.add_argument("--opt", default="")
    args = ap.parse_args()
    kw = eval("dict(" + args.opt + ")")
    src = gen(**kw)
    open(args.out, "w").write(src)
    assemble(args.out, NAME, args.out.replace(".s", ".co"))
    print("ok", args.out, len(src))
```
